```python
import torch

def _softmax(x, axis=-1):
    return torch.softmax(x, dim=axis)
def _gelu(x):
    return torch.nn.functional.gelu(x, approximate="tanh")
def _silu(x):
    return torch.nn.functional.silu(x)
def _sigmoid(x):
    return torch.sigmoid(x)
def _layernorm(x, axis=-1, eps=1e-5):
    m = x.mean(dim=axis, keepdim=True)
    v = x.var(dim=axis, keepdim=True, unbiased=False)
    return (x - m) / torch.sqrt(v + eps)
def _scatter_add(tgt, idx, src, axis=0):
    return tgt.clone().index_add_(axis, idx, src)
def _segment_sum(src, seg, n):
    out = torch.zeros((n,) + src.shape[1:], dtype=src.dtype)
    return out.index_add_(0, seg, src)
def _pad(x, pw):
    flat = tuple(v for pair in reversed(pw) for v in pair)
    return torch.nn.functional.pad(x, flat)

kernel_name = 'standalone__fm_second_order__recsys'

def setup_inputs():

    _w = (lambda a: (lambda t: t.to(torch.bfloat16) if t.is_floating_point() else t)(torch.as_tensor(a)))
    B, F, D, V = 16384, 26, 128, min(100000, 100000)
    return {
        "idx": _w((lambda lo, hi, *s: torch.randint(lo, hi, s))(0, V, B, F).to(torch.int64)),
        "table": _w((lambda *s: torch.randn(*s, dtype=torch.bfloat16) * 0.05)(V, D)),
    }

def reference(idx, table):
    emb = table[idx]
    sum_sq = emb.sum(axis=1) ** 2
    sq_sum = (emb ** 2).sum(axis=1)
    return 0.5 * (sum_sq - sq_sum).sum(axis=-1)
```

```python
import sys, argparse

HEADER = """; Kernarg layout for this problem (40 bytes, ptrs only, base s[0:1]):
"""
NAME = "standalone__fm_second_order__recsys_kernel"

def epilogue(e, S, Q, T, res):
    MASK = "s20"
    e(f"    v_cvt_pk_bf16_f32 v{T}, v{S}, v{S+1}")
    e(f"    v_cvt_pk_bf16_f32 v{T+1}, v{S+2}, v{S+3}")
    e(f"    v_cvt_pk_bf16_f32 v{T+2}, v{Q}, v{Q+1}")
    e(f"    v_cvt_pk_bf16_f32 v{T+3}, v{Q+2}, v{Q+3}")
    e(f"    v_lshlrev_b32 v{S}, 16, v{T}")
    e(f"    v_and_b32 v{S+1}, {MASK}, v{T}")
    e(f"    v_lshlrev_b32 v{S+2}, 16, v{T+1}")
    e(f"    v_and_b32 v{S+3}, {MASK}, v{T+1}")
    e(f"    v_lshlrev_b32 v{Q}, 16, v{T+2}")
    e(f"    v_and_b32 v{Q+1}, {MASK}, v{T+2}")
    e(f"    v_lshlrev_b32 v{Q+2}, 16, v{T+3}")
    e(f"    v_and_b32 v{Q+3}, {MASK}, v{T+3}")
    for r in range(4):
        e(f"    v_mul_f32 v{S+r}, v{S+r}, v{S+r}")
    e(f"    v_cvt_pk_bf16_f32 v{T}, v{S}, v{S+1}")
    e(f"    v_cvt_pk_bf16_f32 v{T+1}, v{S+2}, v{S+3}")
    e(f"    v_lshlrev_b32 v{S}, 16, v{T}")
    e(f"    v_and_b32 v{S+1}, {MASK}, v{T}")
    e(f"    v_lshlrev_b32 v{S+2}, 16, v{T+1}")
    e(f"    v_and_b32 v{S+3}, {MASK}, v{T+1}")
    for r in range(4):
        e(f"    v_sub_f32 v{S+r}, v{S+r}, v{Q+r}")
    e(f"    v_cvt_pk_bf16_f32 v{T}, v{S}, v{S+1}")
    e(f"    v_cvt_pk_bf16_f32 v{T+1}, v{S+2}, v{S+3}")
    e(f"    v_lshlrev_b32 v{S}, 16, v{T}")
    e(f"    v_and_b32 v{S+1}, {MASK}, v{T}")
    e(f"    v_lshlrev_b32 v{S+2}, 16, v{T+1}")
    e(f"    v_and_b32 v{S+3}, {MASK}, v{T+1}")
    e(f"    v_add_f32 v{S}, v{S}, v{S+1}")
    e(f"    v_add_f32 v{S+2}, v{S+2}, v{S+3}")
    e(f"    v_add_f32 v{res}, v{S}, v{S+2}")
    for sh in (8, 4, 2, 1):
        e("    s_nop 1")
        e(f"    v_add_f32_dpp v{res}, v{res}, v{res} row_ror:{sh} row_mask:0xf bank_mask:0xf")
    e("    s_nop 1")
    e(f"    v_add_f32_dpp v{res}, v{res}, v{res} row_bcast:15 row_mask:0xa bank_mask:0xf")

def gen(waves_per_block=4, ldflags="", pkmul=True):
    B = 16384
    nwaves = B // 4
    nblk = nwaves // waves_per_block
    L = []
    e = L.append
    e(HEADER.rstrip())
    e(f"; @launch grid=({nblk},1,1) block=({64*waves_per_block},1,1) lds=0")
    e('.amdgcn_target "amdgcn-amd-amdhsa--gfx950"')
    e(".text")
    e(f".globl {NAME}")
    e(".p2align 8")
    e(f".type {NAME},@function")
    e(f"{NAME}:")
    ASEL = 8
    S, Q = 12, 16
    RA = 20; RB = 21
    T = 2
    D0 = 24
    e(f"    s_cmp_ge_u32 s2, {nblk}")
    e("    s_cbranch_scc1 L_end")
    e("    s_load_dwordx4 s[4:7], s[0:1], 0")
    e("    s_load_dwordx2 s[16:17], s[0:1], 16")
    e("    v_and_b32 v1, 63, v0                 ; lane")
    e("    v_lshrrev_b32 v5, 6, v0")
    e(f"    s_mul_i32 s3, s2, {416*waves_per_block}")
    e("    v_mul_u32_u24 v5, 416, v5            ; wave*416")
    e("    v_and_b32 v2, 15, v0                 ; j")
    e("    v_lshrrev_b32 v6, 5, v1              ; g>>1")
    e("    v_bfe_u32 v7, v1, 4, 1               ; g&1")
    e("    v_mul_u32_u24 v3, 208, v6")
    e("    v_mul_u32_u24 v4, 52, v7")
    e("    v_add3_u32 v5, v5, v3, v4")
    e("    v_lshl_add_u32 v5, v2, 2, v5         ; + 4j")
    e("    v_add_u32 v5, s3, v5")
    e("    v_lshrrev_b32 v3, 3, v2              ; m>>3")
    e("    v_and_b32 v4, 1, v2")
    e("    v_lshlrev_b32 v4, 4, v4              ; 16*(m&1)")
    e("    v_mov_b32 v7, 0x3f80")
    e("    v_lshlrev_b32 v7, v4, v7")
    e("    v_cmp_eq_u32 vcc, v3, v6")
    e("    v_bfe_u32 v4, v2, 1, 2               ; (m&7)>>1")
    e("    s_nop 0")
    e("    v_cndmask_b32 v7, 0, v7, vcc")
    for r in range(4):
        e(f"    v_cmp_eq_u32 vcc, {r}, v4")
        e("    s_nop 1")
        e(f"    v_cndmask_b32 v{ASEL+r}, 0, v7, vcc")
    e("    v_lshlrev_b32 v2, 4, v2              ; laneoff = j*16")
    e("    v_lshrrev_b32 v7, 6, v0")
    e(f"    s_mul_i32 s3, s2, {8*waves_per_block}")
    e("    v_lshlrev_b32 v7, 3, v7")
    e("    v_lshl_add_u32 v7, v6, 2, v7")
    e("    v_add_u32 v1, s3, v7")
    e("    s_mov_b32 s20, 0xffff0000")
    e("    s_waitcnt lgkmcnt(0)")
    e("    s_mov_b32 s8, s4")
    e("    s_and_b32 s9, s5, 0xffff")
    e(f"    s_mov_b32 s10, {B*104}")
    e("    s_mov_b32 s11, 0x00020000")
    e("    s_mov_b32 s12, s6")
    e("    s_and_b32 s13, s7, 0xffff")
    e(f"    s_mov_b32 s14, {100000*256}")
    e("    s_mov_b32 s15, 0x00020000")
    e("    buffer_load_dword v3, v5, s[8:11], 0 offen")
    e("    buffer_load_dword v4, v5, s[8:11], 0 offen offset:104")
    e("    s_and_b32 s17, s17, 0xffff")
    e(f"    s_mov_b32 s18, {B*2}")
    e("    s_mov_b32 s19, 0x00020000")
    e("    s_waitcnt vmcnt(1)")
    e("; @MID")
    e("    v_lshlrev_b32 v3, 8, v3")
    e("    s_nop 1")
    for t in range(13):
        d = D0 + 4*t
        e(f"    v_add_u32_dpp v{d}, v3, v2 row_newbcast:{t} row_mask:0xf bank_mask:0xf")
        e(f"    buffer_load_dwordx4 v[{d}:{d+3}], v{d}, s[12:15], 0 offen {ldflags}".rstrip())
    e("    s_waitcnt vmcnt(13)")
    e("    v_lshlrev_b32 v4, 8, v4")
    e("    s_nop 1")
    for t in range(13):
        d = D0 + 52 + 4*t
        e(f"    v_add_u32_dpp v{d}, v4, v2 row_newbcast:{t} row_mask:0xf bank_mask:0xf")
        e(f"    buffer_load_dwordx4 v[{d}:{d+3}], v{d}, s[12:15], 0 offen {ldflags}".rstrip())
    for task in range(2):
        pend = None
        for t in range(13):
            n = task*13 + t
            d = D0 + 4*n
            e(f"    s_waitcnt vmcnt({25-n})")
            c = "0" if t == 0 else f"v[{S}:{S+3}]"
            e(f"    v_mfma_f32_16x16x32_bf16 v[{S}:{S+3}], v[{ASEL}:{ASEL+3}], v[{d}:{d+3}], {c}")
            if pend is not None:
                e(pend)
            for k in (0, 2):
                e(f"    v_lshlrev_b32 v{T}, 16, v{d+k}")
                e(f"    v_and_b32 v{T+1}, s20, v{d+k}")
                e(f"    v_lshlrev_b32 v{T+2}, 16, v{d+k+1}")
                e(f"    v_and_b32 v{T+3}, s20, v{d+k+1}")
                if pkmul:
                    e(f"    v_pk_mul_f32 v[{T}:{T+1}], v[{T}:{T+1}], v[{T}:{T+1}]")
                    e(f"    v_pk_mul_f32 v[{T+2}:{T+3}], v[{T+2}:{T+3}], v[{T+2}:{T+3}]")
                else:
                    for q in range(4):
                        e(f"    v_mul_f32 v{T+q}, v{T+q}, v{T+q}")
                e(f"    v_cvt_pk_bf16_f32 v{d+k}, v{T}, v{T+1}")
                e(f"    v_cvt_pk_bf16_f32 v{d+k+1}, v{T+2}, v{T+3}")
            c = "0" if t == 0 else f"v[{Q}:{Q+3}]"
            pend = f"    v_mfma_f32_16x16x32_bf16 v[{Q}:{Q+3}], v[{ASEL}:{ASEL+3}], v[{d}:{d+3}], {c}"
        e("    s_nop 1")
        e(pend)
        e("    s_nop 7")
        epilogue(e, S, Q, T, RA if task == 0 else RB)
    e(f"    v_mul_f32 v{RA}, 0.5, v{RA}")
    e(f"    v_mul_f32 v{RB}, 0.5, v{RB}")
    e(f"    v_cvt_pk_bf16_f32 v{RA}, v{RA}, v{RB}")
    e("    s_mov_b32 exec_lo, 0x00010000")
    e("    s_mov_b32 exec_hi, 0x00010000")
    e(f"    buffer_store_dword v{RA}, v1, s[16:19], 0 offen")
    e("L_end:")
    e("    s_endpgm")
    e('.section .rodata,"a"')
    e(".p2align 6")
    e(f".amdhsa_kernel {NAME}")
    e("  .amdhsa_next_free_vgpr 128")
    e("  .amdhsa_next_free_sgpr 24")
    e("  .amdhsa_accum_offset 128")
    e("  .amdhsa_group_segment_fixed_size 0")
    e("  .amdhsa_kernarg_size 40")
    e("  .amdhsa_user_sgpr_count 2")
    e("  .amdhsa_user_sgpr_kernarg_segment_ptr 1")
    e("  .amdhsa_system_sgpr_workgroup_id_x 1")
    e("  .amdhsa_float_denorm_mode_32 3")
    e(".end_amdhsa_kernel")
    return "\n".join(L) + "\n"

if __name__ == "__main__":
    ap = argparse.ArgumentParser()
    ap.add_argument("-o", default="standalone__fm_second_order__recsys.s")
    ap.add_argument("--wpb", type=int, default=4)
    ap.add_argument("--ld", default="")
    ap.add_argument("--nopk", action="store_true")
    a = ap.parse_args()
    open(a.o, "w").write(gen(a.wpb, a.ld, not a.nopk))
```

```python
import sys, argparse
from gen1 import HEADER, NAME

B = 16384

def kd(e, name, nv, ns):
    e('.section .rodata,"a"')
    e(".p2align 6")
    e(f".amdhsa_kernel {name}")
    nv4 = (nv + 3) // 4 * 4
    e(f"  .amdhsa_next_free_vgpr {nv}")
    e(f"  .amdhsa_next_free_sgpr {ns}")
    e(f"  .amdhsa_accum_offset {nv4}")
    e("  .amdhsa_group_segment_fixed_size 0")
    e("  .amdhsa_kernarg_size 40")
    e("  .amdhsa_user_sgpr_count 2")
    e("  .amdhsa_user_sgpr_kernarg_segment_ptr 1")
    e("  .amdhsa_system_sgpr_workgroup_id_x 1")
    e("  .amdhsa_float_denorm_mode_32 3")
    e(".end_amdhsa_kernel")

def rnd4(e, X, T, M="s20"):
    e(f"    v_cvt_pk_bf16_f32 v{T}, v{X}, v{X+1}")
    e(f"    v_cvt_pk_bf16_f32 v{T+1}, v{X+2}, v{X+3}")
    e(f"    v_lshlrev_b32 v{X}, 16, v{T}")
    e(f"    v_and_b32 v{X+1}, {M}, v{T}")
    e(f"    v_lshlrev_b32 v{X+2}, 16, v{T+1}")
    e(f"    v_and_b32 v{X+3}, {M}, v{T+1}")

def epilogue(e, S, Q, T, LP):
    rnd4(e, S, T)
    rnd4(e, Q, T + 2)
    for r in range(4):
        e(f"    v_mul_f32 v{S+r}, v{S+r}, v{S+r}")
    rnd4(e, S, T)
    for r in range(4):
        e(f"    v_sub_f32 v{S+r}, v{S+r}, v{Q+r}")
    rnd4(e, S, T)
    e(f"    v_add_f32 v{S}, v{S}, v{S+1}")
    e(f"    v_add_f32 v{S+2}, v{S+2}, v{S+3}")
    e(f"    v_add_f32 v{S}, v{S}, v{S+2}")
    e(f"    v_mov_b32 v{S+1}, v{S}")
    e("    s_nop 1")
    e(f"    v_permlane16_swap_b32 v{S}, v{S+1}")
    e(f"    v_add_f32 v{S}, v{S}, v{S+1}")
    steps = []
    if LP >= 16: steps.append("row_mirror")
    if LP >= 8: steps.append("row_half_mirror")
    if LP >= 4: steps.append("quad_perm:[2,3,0,1]")
    if LP >= 2: steps.append("quad_perm:[1,0,3,2]")
    for s in steps:
        e("    s_nop 1")
        e(f"    v_add_f32_dpp v{S}, v{S}, v{S} {s} row_mask:0xf bank_mask:0xf")

def gen(NS=2, TPW=1, DEPTH=13, WPB=4, ldflags="", order="taskmajor", combine=True, xmap="mod", nvpad=0):
    LP = 16 // NS
    SPT = 2 * NS
    ntask_slice = B // SPT
    ntasks = ntask_slice * NS
    nblk = ntasks // (WPB * TPW)
    NL = 13 * TPW
    DEPTH = min(DEPTH, NL)
    L = []
    e = L.append
    e(HEADER.rstrip())
    if NS > 1 and combine:
        e(f"; @launch kernel={NAME} grid=({nblk},1,1) block=({64*WPB},1,1) lds=0")
        e(f"; @launch kernel=fm_combine_kernel grid=({B//4//256},1,1) block=(256,1,1) lds=0")
    else:
        e(f"; @launch grid=({nblk},1,1) block=({64*WPB},1,1) lds=0")
    e('.amdgcn_target "amdgcn-amd-amdhsa--gfx950"')
    e(".text")
    e(f".globl {NAME}")
    e(".p2align 8")
    e(f".type {NAME},@function")
    e(f"{NAME}:")
    T = 2
    ASEL = 8
    nacc = TPW if order == "tmajor" else 1
    ACC = 12
    IDX = ACC + 8 * nacc
    IDXS = 14
    D0 = IDX + IDXS * TPW
    D0 = (D0 + 3) // 4 * 4
    NV = D0 + 4 * DEPTH
    e(f"    s_cmp_ge_u32 s2, {nblk}")
    e("    s_cbranch_scc1 L_end")
    e("    s_load_dwordx4 s[4:7], s[0:1], 0")
    if NS > 1:
        e("    s_load_dwordx2 s[16:17], s[0:1], 32")
    else:
        e("    s_load_dwordx2 s[16:17], s[0:1], 16")
    e("    s_and_b32 s21, s2, 7                 ; x")
    e("    s_lshr_b32 s22, s2, 3                ; round")
    lg = {1: 0, 2: 1, 4: 2, 8: 3}[NS]
    if xmap == "mod":
        e(f"    s_and_b32 s23, s21, {NS-1}          ; slice c")
        e(f"    s_lshr_b32 s21, s21, {lg}           ; u")
    else:
        e(f"    s_lshr_b32 s23, s21, {3-lg}          ; slice c")
        e(f"    s_and_b32 s21, s21, {8//NS-1}           ; u")
    e(f"    s_lshl_b32 s22, s22, {3-lg}")
    e("    s_add_u32 s22, s22, s21")
    e("    v_and_b32 v1, 63, v0                 ; lane")
    e("    v_lshrrev_b32 v5, 6, v0")
    e("    v_and_b32 v2, 15, v0                 ; j")
    e("    v_lshrrev_b32 v3, 5, v1              ; h")
    e("    v_bfe_u32 v4, v1, 4, 1               ; parity")
    if NS > 1:
        e(f"    v_lshrrev_b32 v7, {4-lg}, v2         ; sub")
        e(f"    v_lshl_add_u32 v7, v3, {lg}, v7")
    else:
        e("    v_mov_b32 v7, v3")
    e(f"    s_mul_i32 s3, s22, {WPB*TPW*SPT}")
    e(f"    v_mul_u32_u24 v5, {TPW*SPT}, v5")
    e("    v_add3_u32 v7, v7, v5, s3")
    e("    v_mul_u32_u24 v5, 104, v7")
    e("    v_mul_u32_u24 v4, 52, v4")
    e("    v_add_u32 v5, v5, v4")
    if NS > 1:
        e(f"    s_mul_i32 s3, s23, {B*4}")
        e("    v_lshlrev_b32 v1, 2, v7")
        e("    v_add_u32 v1, s3, v1")
    else:
        e("    v_lshlrev_b32 v1, 1, v7")
    e(f"    v_and_b32 v6, {LP-1}, v2")
    e("    v_lshlrev_b32 v6, 4, v6")
    e(f"    s_mul_i32 s3, s23, {256//NS}")
    e("    v_add_u32 v6, s3, v6                 ; laneoff")
    e("    v_lshrrev_b32 v7, 3, v2              ; m>>3")
    e("    v_cmp_eq_u32 vcc, v7, v3")
    e("    v_and_b32 v4, 1, v2")
    e("    v_lshlrev_b32 v4, 4, v4")
    e("    v_mov_b32 v7, 0x3f80")
    e("    v_lshlrev_b32 v7, v4, v7")
    e("    v_cndmask_b32 v7, 0, v7, vcc")
    e("    v_bfe_u32 v4, v2, 1, 2")
    for r in range(4):
        e(f"    v_cmp_eq_u32 vcc, {r}, v4")
        e("    s_nop 1")
        e(f"    v_cndmask_b32 v{ASEL+r}, 0, v7, vcc")
    e("    s_mov_b32 s20, 0xffff0000")
    e("    s_waitcnt lgkmcnt(0)")
    e("    s_mov_b32 s8, s4")
    e("    s_and_b32 s9, s5, 0xffff")
    e(f"    s_mov_b32 s10, {B*104}")
    e("    s_mov_b32 s11, 0x00020000")
    e("    s_mov_b32 s12, s6")
    e("    s_and_b32 s13, s7, 0xffff")
    e(f"    s_mov_b32 s14, {100000*256}")
    e("    s_mov_b32 s15, 0x00020000")
    nidx = 0
    for k in range(TPW):
        ib = IDX + IDXS * k
        off = k * SPT * 104
        assert off + 48 < 4096
        for q in range(3):
            e(f"    buffer_load_dwordx4 v[{ib+4*q}:{ib+4*q+3}], v5, s[8:11], 0 offen offset:{off+16*q}")
        e(f"    buffer_load_dword v{ib+12}, v5, s[8:11], 0 offen offset:{off+48}")
        nidx += 4
    e("    s_and_b32 s17, s17, 0xffff")
    e(f"    s_mov_b32 s18, {B*4*NS if NS>1 else B*2}")
    e("    s_mov_b32 s19, 0x00020000")
    e("    s_waitcnt vmcnt(0)")
    e("; @MID")
    if order == "tmajor":
        items = [(k, t) for t in range(13) for k in range(TPW)]
    else:
        items = [(k, t) for k in range(TPW) for t in range(13)]
    def issue(n):
        k, t = items[n]
        d = D0 + 4 * (n % DEPTH)
        e(f"    v_lshl_add_u32 v{d}, v{IDX+IDXS*k+t}, 8, v6")
        e(f"    buffer_load_dwordx4 v[{d}:{d+3}], v{d}, s[12:15], 0 offen {ldflags}".rstrip())
    for n in range(DEPTH):
        issue(n)
    nstores = 0
    issued = DEPTH
    outstanding = [("L", n) for n in range(DEPTH)]
    pend = None
    pend_reissue = None
    for n in range(NL):
        k, t = items[n]
        a = ACC + 8 * (k if order == "tmajor" else 0)
        S, Q = a, a + 4
        d = D0 + 4 * (n % DEPTH)
        pos = outstanding.index(("L", n))
        e(f"    s_waitcnt vmcnt({len(outstanding)-pos-1})")
        outstanding = outstanding[pos+1:]
        c = "0" if t == 0 else f"v[{S}:{S+3}]"
        e(f"    v_mfma_f32_16x16x32_bf16 v[{S}:{S+3}], v[{ASEL}:{ASEL+3}], v[{d}:{d+3}], {c}")
        if pend is not None:
            e(pend); pend = None
            if pend_reissue is not None:
                issue(pend_reissue); outstanding.append(("L", pend_reissue)); pend_reissue = None
        for kk in (0, 2):
            e(f"    v_lshlrev_b32 v{T}, 16, v{d+kk}")
            e(f"    v_and_b32 v{T+1}, s20, v{d+kk}")
            e(f"    v_lshlrev_b32 v{T+2}, 16, v{d+kk+1}")
            e(f"    v_and_b32 v{T+3}, s20, v{d+kk+1}")
            e(f"    v_pk_mul_f32 v[{T}:{T+1}], v[{T}:{T+1}], v[{T}:{T+1}]")
            e(f"    v_pk_mul_f32 v[{T+2}:{T+3}], v[{T+2}:{T+3}], v[{T+2}:{T+3}]")
            e(f"    v_cvt_pk_bf16_f32 v{d+kk}, v{T}, v{T+1}")
            e(f"    v_cvt_pk_bf16_f32 v{d+kk+1}, v{T+2}, v{T+3}")
        c = "0" if t == 0 else f"v[{Q}:{Q+3}]"
        pend = f"    v_mfma_f32_16x16x32_bf16 v[{Q}:{Q+3}], v[{ASEL}:{ASEL+3}], v[{d}:{d+3}], {c}"
        if n + DEPTH < NL:
            pend_reissue = n + DEPTH
        if t == 12:
            e("    s_nop 1")
            e(pend); pend = None
            if pend_reissue is not None:
                issue(pend_reissue); outstanding.append(("L", pend_reissue)); pend_reissue = None
            e("    s_nop 7")
            epilogue(e, S, Q, T, LP)
            mask = 0
            for l in range(64):
                g, j = l >> 4, l & 15
                if (g & 1) == 0 and (j % LP) == 0:
                    mask |= 1 << l
            if NS == 1:
                e(f"    v_mul_f32 v{S}, 0.5, v{S}")
                e(f"    v_cvt_pk_bf16_f32 v{S}, v{S}, v{S}")
            e(f"    s_mov_b32 exec_lo, 0x{mask & 0xffffffff:08x}")
            e(f"    s_mov_b32 exec_hi, 0x{mask >> 32:08x}")
            if NS == 1:
                e(f"    buffer_store_short v{S}, v1, s[16:19], 0 offen offset:{k*SPT*2}")
            else:
                e(f"    buffer_store_dword v{S}, v1, s[16:19], 0 offen offset:{k*SPT*4}")
            outstanding.append(("S", k))
            if n != NL - 1:
                e("    s_mov_b64 exec, -1")
    e("L_end:")
    e("    s_endpgm")
    kd(e, NAME, max(NV, nvpad), 24)
    if NS > 1 and combine:
        C = "fm_combine_kernel"
        e(".text")
        e(f".globl {C}")
        e(".p2align 8")
        e(f".type {C},@function")
        e(f"{C}:")
        e(f"    s_cmp_ge_u32 s2, {B//4//256}")
        e("    s_cbranch_scc1 L_end2")
        e("    s_load_dwordx2 s[4:5], s[0:1], 32")
        e("    s_load_dwordx2 s[8:9], s[0:1], 16")
        e("    s_lshl_b32 s3, s2, 8")
        e("    v_add_u32 v0, s3, v0")
        e("    v_lshlrev_b32 v1, 4, v0")
        e("    v_lshlrev_b32 v2, 3, v0")
        e("    s_waitcnt lgkmcnt(0)")
        e("    s_and_b32 s5, s5, 0xffff")
        e(f"    s_mov_b32 s6, {B*4*NS}")
        e("    s_mov_b32 s7, 0x00020000")
        e("    s_and_b32 s9, s9, 0xffff")
        e(f"    s_mov_b32 s10, {B*2}")
        e("    s_mov_b32 s11, 0x00020000")
        for c in range(NS):
            e(f"    s_mov_b32 s12, {c*B*4}")
            e(f"    buffer_load_dwordx4 v[{4+4*c}:{7+4*c}], v1, s[4:7], s12 offen")
        for c in range(1, NS):
            e(f"    s_waitcnt vmcnt({NS-1-c})")
            for r in range(4):
                e(f"    v_add_f32 v{4+r}, v{4+r}, v{4+4*c+r}")
        for r in range(4):
            e(f"    v_mul_f32 v{4+r}, 0.5, v{4+r}")
        e("    v_cvt_pk_bf16_f32 v4, v4, v5")
        e("    v_cvt_pk_bf16_f32 v5, v6, v7")
        e("    buffer_store_dwordx2 v[4:5], v2, s[8:11], 0 offen")
        e("L_end2:")
        e("    s_endpgm")
        kd(e, C, 4 + 4 * NS, 24)
    return "\n".join(L) + "\n"

if __name__ == "__main__":
    ap = argparse.ArgumentParser()
    ap.add_argument("-o", required=True)
    ap.add_argument("--ns", type=int, default=2)
    ap.add_argument("--tpw", type=int, default=1)
    ap.add_argument("--depth", type=int, default=13)
    ap.add_argument("--wpb", type=int, default=4)
    ap.add_argument("--ld", default="")
    ap.add_argument("--order", default="taskmajor")
    ap.add_argument("--nocombine", action="store_true")
    ap.add_argument("--xmap", default="mod")
    ap.add_argument("--nvpad", type=int, default=0)
    a = ap.parse_args()
    open(a.o, "w").write(gen(a.ns, a.tpw, a.depth, a.wpb, a.ld, a.order, not a.nocombine, a.xmap, a.nvpad))
```

```python
import sys, argparse
from gen1 import HEADER, NAME
from gen2 import kd, rnd4, epilogue

B = 16384
NET13=[[(0,12),(1,10),(2,9),(3,7),(5,11),(6,8)],
[(1,6),(2,3),(4,11),(7,9),(8,10)],
[(0,4),(1,2),(3,6),(7,8),(9,10),(11,12)],
[(4,6),(5,9),(8,11),(10,12)],
[(0,5),(3,8),(4,7),(6,11),(9,10)],
[(0,1),(2,5),(6,9),(7,8),(10,11)],
[(1,3),(2,4),(5,6),(9,10)],
[(1,2),(3,4),(5,7),(6,8)],
[(2,3),(4,5),(6,7),(8,9)],
[(3,4),(5,6)]]
ORDER={0:list(range(13)),
1:[2, 3, 5, 6, 1, 0, 4, 11, 8, 10, 7, 9, 12],2:[2, 1, 5, 0, 4, 3, 6, 8, 7, 12, 11, 10, 9],
3:[1, 0, 2, 5, 3, 7, 4, 11, 6, 8, 9, 12, 10],4:[1, 0, 2, 5, 3, 7, 4, 8, 6, 9, 11, 10, 12],
5:[1, 0, 2, 3, 4, 5, 7, 8, 6, 9, 11, 10, 12],6:[0, 1, 2, 3, 4, 5, 7, 6, 8, 9, 10, 11, 12],
7:[0, 1, 2, 3, 4, 5, 7, 8, 6, 9, 10, 11, 12],8:[0, 1, 2, 3, 5, 4, 7, 6, 8, 9, 10, 11, 12],
9:list(range(13)),10:list(range(13))}

def combine_kernel(e, NS):
    C = "fm_combine_kernel"
    e(".text")
    e(f".globl {C}")
    e(".p2align 8")
    e(f".type {C},@function")
    e(f"{C}:")
    e(f"    s_cmp_ge_u32 s2, {B//4//256}")
    e("    s_cbranch_scc1 L_end2")
    e("    s_load_dwordx2 s[4:5], s[0:1], 32")
    e("    s_load_dwordx2 s[8:9], s[0:1], 16")
    e("    s_lshl_b32 s3, s2, 8")
    e("    v_add_u32 v0, s3, v0")
    e("    v_lshlrev_b32 v1, 4, v0")
    e("    v_lshlrev_b32 v2, 3, v0")
    e("    s_waitcnt lgkmcnt(0)")
    e("    s_and_b32 s5, s5, 0xffff")
    e(f"    s_mov_b32 s6, {B*4*NS}")
    e("    s_mov_b32 s7, 0x00020000")
    e("    s_and_b32 s9, s9, 0xffff")
    e(f"    s_mov_b32 s10, {B*2}")
    e("    s_mov_b32 s11, 0x00020000")
    for c in range(NS):
        e(f"    s_mov_b32 s12, {c*B*4}")
        e(f"    buffer_load_dwordx4 v[{4+4*c}:{7+4*c}], v1, s[4:7], s12 offen")
    for c in range(1, NS):
        e(f"    s_waitcnt vmcnt({NS-1-c})")
        for r in range(4):
            e(f"    v_add_f32 v{4+r}, v{4+r}, v{4+4*c+r}")
    for r in range(4):
        e(f"    v_mul_f32 v{4+r}, 0.5, v{4+r}")
    e("    v_cvt_pk_bf16_f32 v4, v4, v5")
    e("    v_cvt_pk_bf16_f32 v5, v6, v7")
    e("    buffer_store_dwordx2 v[4:5], v2, s[8:11], 0 offen")
    e("L_end2:")
    e("    s_endpgm")
    kd(e, C, 4 + 4 * NS, 24)

def gen(NS=2, TPW=2, DEPTH=6, WPB=4, ldflags="", layers=6, barrier=False, combine=True, nvpad=0, xmap="mod"):
    LP = 16 // NS
    SPT = 2 * NS
    ntasks = B // SPT * NS
    nblk = ntasks // (WPB * TPW)
    NL = 13 * TPW
    DEPTH = min(DEPTH, NL)
    WB = TPW * SPT * 104
    nld = (WB + 511) // 512
    LDSW = nld * 512
    L = []
    e = L.append
    e(HEADER.rstrip())
    if NS > 1 and combine:
        e(f"; @launch kernel={NAME} grid=({nblk},1,1) block=({64*WPB},1,1) lds={LDSW*WPB}")
        e(f"; @launch kernel=fm_combine_kernel grid=({B//4//256},1,1) block=(256,1,1) lds=0")
    else:
        e(f"; @launch grid=({nblk},1,1) block=({64*WPB},1,1) lds={LDSW*WPB}")
    e('.amdgcn_target "amdgcn-amd-amdhsa--gfx950"')
    e(".text")
    e(f".globl {NAME}")
    e(".p2align 8")
    e(f".type {NAME},@function")
    e(f"{NAME}:")
    T = 2
    ASEL = 8
    ACC = 12
    IDX = ACC + 8 * TPW
    IDXS = 14
    D0 = (IDX + IDXS * TPW + 3) // 4 * 4
    NV = D0 + 4 * DEPTH
    lg = {1: 0, 2: 1}[NS]
    e(f"    s_cmp_ge_u32 s2, {nblk}")
    e("    s_cbranch_scc1 L_end")
    e("    s_load_dwordx4 s[4:7], s[0:1], 0")
    e(f"    s_load_dwordx2 s[16:17], s[0:1], {32 if NS>1 else 16}")
    if NS > 1:
        e("    s_and_b32 s21, s2, 7                 ; x")
        e("    s_lshr_b32 s22, s2, 3                ; round")
        if xmap == "mod":
            e(f"    s_and_b32 s23, s21, {NS-1}          ; slice c")
            e(f"    s_lshr_b32 s21, s21, {lg}           ; u")
        else:
            e(f"    s_lshr_b32 s23, s21, {3-lg}          ; slice c")
            e(f"    s_and_b32 s21, s21, {8//NS-1}           ; u")
        e(f"    s_lshl_b32 s22, s22, {3-lg}")
        e("    s_add_u32 s22, s22, s21")
    else:
        e("    s_mov_b32 s22, s2")
    e("    v_and_b32 v1, 63, v0                 ; lane")
    e("    v_lshrrev_b32 v5, 6, v0")
    e(f"    s_mul_i32 s3, s22, {WPB*WB}")
    e(f"    v_mul_u32_u24 v6, {WB}, v5")
    e("    v_lshl_add_u32 v6, v1, 3, v6")
    e("    v_add_u32 v6, s3, v6")
    e("    s_mov_b32 s20, 0xffff0000")
    e(f"    s_mov_b32 s10, {B*104}")
    e("    s_mov_b32 s11, 0x00020000")
    e(f"    s_mov_b32 s14, {100000*256}")
    e("    s_mov_b32 s15, 0x00020000")
    e("    s_waitcnt lgkmcnt(0)")
    e("    s_mov_b32 s8, s4")
    e("    s_and_b32 s9, s5, 0xffff")
    for k in range(nld):
        e(f"    buffer_load_dwordx2 v[{D0+2*k}:{D0+2*k+1}], v6, s[8:11], 0 offen offset:{512*k}")
    e("    s_mov_b32 s12, s6")
    e("    s_and_b32 s13, s7, 0xffff")
    e("    s_and_b32 s17, s17, 0xffff")
    e(f"    s_mov_b32 s18, {B*4*NS if NS>1 else B*2}")
    e("    s_mov_b32 s19, 0x00020000")
    e("    v_and_b32 v2, 15, v0                 ; j")
    e("    v_lshrrev_b32 v3, 5, v1              ; h")
    e("    v_bfe_u32 v4, v1, 4, 1               ; parity")
    if NS > 1:
        e(f"    v_lshrrev_b32 v7, {4-lg}, v2         ; sub")
        e(f"    v_lshl_add_u32 v7, v3, {lg}, v7")
    else:
        e("    v_mov_b32 v7, v3")
    R = D0 + 2 * nld
    e(f"    v_mul_u32_u24 v6, {LDSW}, v5")
    e(f"    v_mul_u32_u24 v{R}, 104, v7")
    e("    v_mul_u32_u24 v4, 52, v4")
    e(f"    v_add3_u32 v{R}, v{R}, v4, v6")
    e("    v_lshl_add_u32 v6, v1, 3, v6")
    e(f"    s_mul_i32 s3, s22, {WPB*TPW*SPT}")
    e(f"    v_mul_u32_u24 v5, {TPW*SPT}, v5")
    e("    v_add3_u32 v7, v7, v5, s3")
    if NS > 1:
        e(f"    s_mul_i32 s3, s23, {B*4}")
        e("    v_lshlrev_b32 v1, 2, v7")
        e("    v_add_u32 v1, s3, v1")
    else:
        e("    v_lshlrev_b32 v1, 1, v7")
    e("    v_lshrrev_b32 v7, 3, v2              ; m>>3")
    e("    v_cmp_eq_u32 vcc, v7, v3")
    e("    v_and_b32 v4, 1, v2")
    e("    v_lshlrev_b32 v4, 4, v4")
    e("    v_mov_b32 v7, 0x3f80")
    e("    v_lshlrev_b32 v7, v4, v7")
    e("    v_cndmask_b32 v7, 0, v7, vcc")
    e("    v_bfe_u32 v4, v2, 1, 2")
    for r in range(4):
        e(f"    v_cmp_eq_u32 vcc, {r}, v4")
        e("    s_nop 1")
        e(f"    v_cndmask_b32 v{ASEL+r}, 0, v7, vcc")
    e(f"    v_and_b32 v7, {LP-1}, v2")
    e("    v_lshlrev_b32 v7, 4, v7")
    if NS > 1:
        e(f"    s_mul_i32 s3, s23, {256//NS}")
        e("    v_add_u32 v7, s3, v7                 ; laneoff")
    LO = 7
    for k in range(nld):
        e(f"    s_waitcnt vmcnt({nld-1-k})")
        e(f"    ds_write_b64 v6, v[{D0+2*k}:{D0+2*k+1}] offset:{512*k}")
    obase = 0
    for k in range(TPW):
        ib = IDX + IDXS * k
        o = k * SPT * 26 - obase
        if o + 12 >= 256:
            e(f"    v_add_u32 v{R}, {o*4}, v{R}")
            obase += o; o = 0
        for q in range(6):
            e(f"    ds_read2_b32 v[{ib+2*q}:{ib+2*q+1}], v{R} offset0:{o+2*q} offset1:{o+2*q+1}")
        e(f"    ds_read_b32 v{ib+12}, v{R} offset:{(o+12)*4}")
    phys = []
    for k in range(TPW):
        ib = IDX + IDXS * k
        e(f"    s_waitcnt lgkmcnt({7*(TPW-1-k) if 7*(TPW-1-k) < 16 else 15})")
        p = list(range(ib, ib + 13)); spare = ib + 13
        for Ly in NET13[:layers]:
            for a, b in Ly:
                e(f"    v_min_u32 v{spare}, v{p[a]}, v{p[b]}")
                e(f"    v_max_u32 v{p[b]}, v{p[a]}, v{p[b]}")
                p[a], spare = spare, p[a]
        phys.append([p[i] for i in ORDER[layers]])
    if barrier:
        e("    s_barrier")
    e("; @MID")
    items = [(k, t) for t in range(13) for k in range(TPW)]
    def issue(n):
        k, t = items[n]
        d = D0 + 4 * (n % DEPTH)
        e(f"    v_lshl_add_u32 v{d}, v{phys[k][t]}, 8, v{LO}")
        e(f"    buffer_load_dwordx4 v[{d}:{d+3}], v{d}, s[12:15], 0 offen {ldflags}".rstrip())
    for n in range(DEPTH):
        issue(n)
    outstanding = [("L", n) for n in range(DEPTH)]
    pend = None
    pend_reissue = None
    finals = []
    for n in range(NL):
        k, t = items[n]
        a = ACC + 8 * k
        S, Q = a, a + 4
        d = D0 + 4 * (n % DEPTH)
        pos = outstanding.index(("L", n))
        e(f"    s_waitcnt vmcnt({len(outstanding)-pos-1})")
        outstanding = outstanding[pos+1:]
        c = "0" if t == 0 else f"v[{S}:{S+3}]"
        e(f"    v_mfma_f32_16x16x32_bf16 v[{S}:{S+3}], v[{ASEL}:{ASEL+3}], v[{d}:{d+3}], {c}")
        if pend is not None:
            e(pend); pend = None
            if pend_reissue is not None:
                issue(pend_reissue); outstanding.append(("L", pend_reissue)); pend_reissue = None
        for kk in (0, 2):
            e(f"    v_lshlrev_b32 v{T}, 16, v{d+kk}")
            e(f"    v_and_b32 v{T+1}, s20, v{d+kk}")
            e(f"    v_lshlrev_b32 v{T+2}, 16, v{d+kk+1}")
            e(f"    v_and_b32 v{T+3}, s20, v{d+kk+1}")
            e(f"    v_pk_mul_f32 v[{T}:{T+1}], v[{T}:{T+1}], v[{T}:{T+1}]")
            e(f"    v_pk_mul_f32 v[{T+2}:{T+3}], v[{T+2}:{T+3}], v[{T+2}:{T+3}]")
            e(f"    v_cvt_pk_bf16_f32 v{d+kk}, v{T}, v{T+1}")
            e(f"    v_cvt_pk_bf16_f32 v{d+kk+1}, v{T+2}, v{T+3}")
        c = "0" if t == 0 else f"v[{Q}:{Q+3}]"
        pend = f"    v_mfma_f32_16x16x32_bf16 v[{Q}:{Q+3}], v[{ASEL}:{ASEL+3}], v[{d}:{d+3}], {c}"
        if n + DEPTH < NL:
            pend_reissue = n + DEPTH
    e("    s_nop 1")
    e(pend)
    if TPW == 1:
        e("    s_nop 7")
    mask = 0
    for l in range(64):
        g, j = l >> 4, l & 15
        if (g & 1) == 0 and (j % LP) == 0:
            mask |= 1 << l
    for k in range(TPW):
        a = ACC + 8 * k
        epilogue(e, a, a + 4, T, LP)
        if NS == 1:
            e(f"    v_mul_f32 v{a}, 0.5, v{a}")
            e(f"    v_cvt_pk_bf16_f32 v{a}, v{a}, v{a}")
    e(f"    s_mov_b32 exec_lo, 0x{mask & 0xffffffff:08x}")
    e(f"    s_mov_b32 exec_hi, 0x{mask >> 32:08x}")
    for k in range(TPW):
        a = ACC + 8 * k
        if NS == 1:
            e(f"    buffer_store_short v{a}, v1, s[16:19], 0 offen offset:{k*SPT*2}")
        else:
            e(f"    buffer_store_dword v{a}, v1, s[16:19], 0 offen offset:{k*SPT*4}")
    e("L_end:")
    e("    s_endpgm")
    kd(e, NAME, max(NV, nvpad), 24)
    if NS > 1 and combine:
        combine_kernel(e, NS)
    return "\n".join(L) + "\n"

if __name__ == "__main__":
    ap = argparse.ArgumentParser()
    ap.add_argument("-o", required=True)
    ap.add_argument("--ns", type=int, default=2)
    ap.add_argument("--tpw", type=int, default=2)
    ap.add_argument("--depth", type=int, default=6)
    ap.add_argument("--wpb", type=int, default=4)
    ap.add_argument("--ld", default="")
    ap.add_argument("--layers", type=int, default=6)
    ap.add_argument("--barrier", action="store_true")
    ap.add_argument("--nocombine", action="store_true")
    ap.add_argument("--nvpad", type=int, default=0)
    ap.add_argument("--xmap", default="mod")
    a = ap.parse_args()
    open(a.o, "w").write(gen(a.ns, a.tpw, a.depth, a.wpb, a.ld, a.layers, a.barrier, not a.nocombine, a.nvpad, a.xmap))
```

```python
import sys, argparse
from gen1 import HEADER, NAME
from gen2 import kd, rnd4, epilogue

B = 16384
NET13=[[(0,12),(1,10),(2,9),(3,7),(5,11),(6,8)],
[(1,6),(2,3),(4,11),(7,9),(8,10)],
[(0,4),(1,2),(3,6),(7,8),(9,10),(11,12)],
[(4,6),(5,9),(8,11),(10,12)],
[(0,5),(3,8),(4,7),(6,11),(9,10)],
[(0,1),(2,5),(6,9),(7,8),(10,11)],
[(1,3),(2,4),(5,6),(9,10)],
[(1,2),(3,4),(5,7),(6,8)],
[(2,3),(4,5),(6,7),(8,9)],
[(3,4),(5,6)]]
ORDER={0:list(range(13)),
1:[2, 3, 5, 6, 1, 0, 4, 11, 8, 10, 7, 9, 12],2:[2, 1, 5, 0, 4, 3, 6, 8, 7, 12, 11, 10, 9],
3:[1, 0, 2, 5, 3, 7, 4, 11, 6, 8, 9, 12, 10],4:[1, 0, 2, 5, 3, 7, 4, 8, 6, 9, 11, 10, 12],
5:[1, 0, 2, 3, 4, 5, 7, 8, 6, 9, 11, 10, 12],6:[0, 1, 2, 3, 4, 5, 7, 6, 8, 9, 10, 11, 12],
7:[0, 1, 2, 3, 4, 5, 7, 8, 6, 9, 10, 11, 12],8:[0, 1, 2, 3, 5, 4, 7, 6, 8, 9, 10, 11, 12],
9:list(range(13)),10:list(range(13))}

def combine_kernel(e, NS):
    C = "fm_combine_kernel"
    e(".text")
    e(f".globl {C}")
    e(".p2align 8")
    e(f".type {C},@function")
    e(f"{C}:")
    e(f"    s_cmp_ge_u32 s2, {B//4//256}")
    e("    s_cbranch_scc1 L_end2")
    e("    s_load_dwordx2 s[4:5], s[0:1], 32")
    e("    s_load_dwordx2 s[8:9], s[0:1], 16")
    e("    s_lshl_b32 s3, s2, 8")
    e("    v_add_u32 v0, s3, v0")
    e("    v_lshlrev_b32 v1, 4, v0")
    e("    v_lshlrev_b32 v2, 3, v0")
    e("    s_waitcnt lgkmcnt(0)")
    e("    s_and_b32 s5, s5, 0xffff")
    e(f"    s_mov_b32 s6, {B*4*NS}")
    e("    s_mov_b32 s7, 0x00020000")
    e("    s_and_b32 s9, s9, 0xffff")
    e(f"    s_mov_b32 s10, {B*2}")
    e("    s_mov_b32 s11, 0x00020000")
    for c in range(NS):
        e(f"    s_mov_b32 s12, {c*B*4}")
        e(f"    buffer_load_dwordx4 v[{4+4*c}:{7+4*c}], v1, s[4:7], s12 offen")
    for c in range(1, NS):
        e(f"    s_waitcnt vmcnt({NS-1-c})")
        for r in range(4):
            e(f"    v_add_f32 v{4+r}, v{4+r}, v{4+4*c+r}")
    for r in range(4):
        e(f"    v_mul_f32 v{4+r}, 0.5, v{4+r}")
    e("    v_cvt_pk_bf16_f32 v4, v4, v5")
    e("    v_cvt_pk_bf16_f32 v5, v6, v7")
    e("    buffer_store_dwordx2 v[4:5], v2, s[8:11], 0 offen")
    e("L_end2:")
    e("    s_endpgm")
    kd(e, C, 4 + 4 * NS, 24)

def gen(NS=2, TPW=2, DEPTH=6, WPB=4, ldflags="", layers=6, barrier=False, combine=True, nvpad=0, xmap="mod", PF=0, BAREV=0):
    LP = 16 // NS
    SPT = 2 * NS
    ntasks = B // SPT * NS
    nblk = ntasks // (WPB * TPW)
    NL = 13 * TPW
    DEPTH = min(DEPTH, NL)
    WB = TPW * SPT * 104
    nld = (WB + 511) // 512
    LDSW = nld * 512
    L = []
    e = L.append
    e(HEADER.rstrip())
    if NS > 1 and combine:
        e(f"; @launch kernel={NAME} grid=({nblk},1,1) block=({64*WPB},1,1) lds={LDSW*WPB}")
        e(f"; @launch kernel=fm_combine_kernel grid=({B//4//256},1,1) block=(256,1,1) lds=0")
    else:
        e(f"; @launch grid=({nblk},1,1) block=({64*WPB},1,1) lds={LDSW*WPB}")
    e('.amdgcn_target "amdgcn-amd-amdhsa--gfx950"')
    e(".text")
    e(f".globl {NAME}")
    e(".p2align 8")
    e(f".type {NAME},@function")
    e(f"{NAME}:")
    T = 2
    ASEL = 8
    ACC = 12
    IDX = ACC + 8 * TPW
    IDXS = 14
    D0 = (IDX + IDXS * TPW + 3) // 4 * 4
    NV = D0 + 4 * DEPTH
    lg = {1: 0, 2: 1}[NS]
    e(f"    s_cmp_ge_u32 s2, {nblk}")
    e("    s_cbranch_scc1 L_end")
    e("    s_load_dwordx4 s[4:7], s[0:1], 0")
    e(f"    s_load_dwordx2 s[16:17], s[0:1], {32 if NS>1 else 16}")
    if NS > 1:
        e("    s_and_b32 s21, s2, 7                 ; x")
        e("    s_lshr_b32 s22, s2, 3                ; round")
        if xmap == "mod":
            e(f"    s_and_b32 s23, s21, {NS-1}          ; slice c")
            e(f"    s_lshr_b32 s21, s21, {lg}           ; u")
        else:
            e(f"    s_lshr_b32 s23, s21, {3-lg}          ; slice c")
            e(f"    s_and_b32 s21, s21, {8//NS-1}           ; u")
        e(f"    s_lshl_b32 s22, s22, {3-lg}")
        e("    s_add_u32 s22, s22, s21")
    else:
        e("    s_mov_b32 s22, s2")
    e("    v_and_b32 v1, 63, v0                 ; lane")
    e("    v_lshrrev_b32 v5, 6, v0")
    e(f"    s_mul_i32 s3, s22, {WPB*WB}")
    e(f"    v_mul_u32_u24 v6, {WB}, v5")
    e("    v_lshl_add_u32 v6, v1, 3, v6")
    e("    v_add_u32 v6, s3, v6")
    e("    s_mov_b32 s20, 0xffff0000")
    e(f"    s_mov_b32 s10, {B*104}")
    e("    s_mov_b32 s11, 0x00020000")
    e(f"    s_mov_b32 s14, {100000*256}")
    e("    s_mov_b32 s15, 0x00020000")
    e("    s_waitcnt lgkmcnt(0)")
    e("    s_mov_b32 s8, s4")
    e("    s_and_b32 s9, s5, 0xffff")
    for k in range(nld):
        e(f"    buffer_load_dwordx2 v[{D0+2*k}:{D0+2*k+1}], v6, s[8:11], 0 offen offset:{512*k}")
    e("    s_mov_b32 s12, s6")
    e("    s_and_b32 s13, s7, 0xffff")
    npf = 0
    if PF:
        P = D0 + 2 * nld + 1
        e("    s_lshr_b32 s3, s2, 3")
        e(f"    s_mul_i32 s3, s3, {WPB*PF}")
        e(f"    v_mul_u32_u24 v{P}, {PF}, v5")
        e(f"    v_add3_u32 v{P}, v{P}, v1, s3")
        if NS > 1:
            e(f"    s_lshl_b32 s3, s23, 7")
            e(f"    v_lshl_add_u32 v{P}, v{P}, 8, s3")
        else:
            e(f"    v_lshlrev_b32 v{P}, 7, v{P}")
        if PF < 64:
            m = (1 << PF) - 1
            e(f"    s_mov_b32 exec_lo, 0x{m & 0xffffffff:08x}")
            e(f"    s_mov_b32 exec_hi, 0")
        e(f"    buffer_load_dword v{P}, v{P}, s[12:15], 0 offen")
        if PF < 64:
            e("    s_mov_b64 exec, -1")
        npf = 1
    e("    s_and_b32 s17, s17, 0xffff")
    e(f"    s_mov_b32 s18, {B*4*NS if NS>1 else B*2}")
    e("    s_mov_b32 s19, 0x00020000")
    e("    v_and_b32 v2, 15, v0                 ; j")
    e("    v_lshrrev_b32 v3, 5, v1              ; h")
    e("    v_bfe_u32 v4, v1, 4, 1               ; parity")
    if NS > 1:
        e(f"    v_lshrrev_b32 v7, {4-lg}, v2         ; sub")
        e(f"    v_lshl_add_u32 v7, v3, {lg}, v7")
    else:
        e("    v_mov_b32 v7, v3")
    R = D0 + 2 * nld
    e(f"    v_mul_u32_u24 v6, {LDSW}, v5")
    e(f"    v_mul_u32_u24 v{R}, 104, v7")
    e("    v_mul_u32_u24 v4, 52, v4")
    e(f"    v_add3_u32 v{R}, v{R}, v4, v6")
    e("    v_lshl_add_u32 v6, v1, 3, v6")
    e(f"    s_mul_i32 s3, s22, {WPB*TPW*SPT}")
    e(f"    v_mul_u32_u24 v5, {TPW*SPT}, v5")
    e("    v_add3_u32 v7, v7, v5, s3")
    if NS > 1:
        e(f"    s_mul_i32 s3, s23, {B*4}")
        e("    v_lshlrev_b32 v1, 2, v7")
        e("    v_add_u32 v1, s3, v1")
    else:
        e("    v_lshlrev_b32 v1, 1, v7")
    e("    v_lshrrev_b32 v7, 3, v2              ; m>>3")
    e("    v_cmp_eq_u32 vcc, v7, v3")
    e("    v_and_b32 v4, 1, v2")
    e("    v_lshlrev_b32 v4, 4, v4")
    e("    v_mov_b32 v7, 0x3f80")
    e("    v_lshlrev_b32 v7, v4, v7")
    e("    v_cndmask_b32 v7, 0, v7, vcc")
    e("    v_bfe_u32 v4, v2, 1, 2")
    for r in range(4):
        e(f"    v_cmp_eq_u32 vcc, {r}, v4")
        e("    s_nop 1")
        e(f"    v_cndmask_b32 v{ASEL+r}, 0, v7, vcc")
    e(f"    v_and_b32 v7, {LP-1}, v2")
    e("    v_lshlrev_b32 v7, 4, v7")
    if NS > 1:
        e(f"    s_mul_i32 s3, s23, {256//NS}")
        e("    v_add_u32 v7, s3, v7                 ; laneoff")
    LO = 7
    for k in range(nld):
        e(f"    s_waitcnt vmcnt({nld-1-k+npf})")
        e(f"    ds_write_b64 v6, v[{D0+2*k}:{D0+2*k+1}] offset:{512*k}")
    obase = 0
    for k in range(TPW):
        ib = IDX + IDXS * k
        o = k * SPT * 26 - obase
        if o + 12 >= 256:
            e(f"    v_add_u32 v{R}, {o*4}, v{R}")
            obase += o; o = 0
        for q in range(6):
            e(f"    ds_read2_b32 v[{ib+2*q}:{ib+2*q+1}], v{R} offset0:{o+2*q} offset1:{o+2*q+1}")
        e(f"    ds_read_b32 v{ib+12}, v{R} offset:{(o+12)*4}")
    phys = []
    for k in range(TPW):
        ib = IDX + IDXS * k
        e(f"    s_waitcnt lgkmcnt({7*(TPW-1-k) if 7*(TPW-1-k) < 16 else 15})")
        p = list(range(ib, ib + 13)); spare = ib + 13
        for Ly in NET13[:layers]:
            for a, b in Ly:
                e(f"    v_min_u32 v{spare}, v{p[a]}, v{p[b]}")
                e(f"    v_max_u32 v{p[b]}, v{p[a]}, v{p[b]}")
                p[a], spare = spare, p[a]
        phys.append([p[i] for i in ORDER[layers]])
    if barrier:
        e("    s_barrier")
    e("; @MID")
    items = [(k, t) for t in range(13) for k in range(TPW)]
    def issue(n):
        k, t = items[n]
        d = D0 + 4 * (n % DEPTH)
        e(f"    v_lshl_add_u32 v{d}, v{phys[k][t]}, 8, v{LO}")
        e(f"    buffer_load_dwordx4 v[{d}:{d+3}], v{d}, s[12:15], 0 offen {ldflags}".rstrip())
    for n in range(DEPTH):
        issue(n)
    outstanding = [("L", n) for n in range(DEPTH)]
    pend = None
    pend_reissue = None
    finals = []
    for n in range(NL):
        k, t = items[n]
        a = ACC + 8 * k
        S, Q = a, a + 4
        d = D0 + 4 * (n % DEPTH)
        pos = outstanding.index(("L", n))
        if BAREV and n > 0 and n % BAREV == 0 and n + DEPTH <= NL:
            e("    s_barrier")
        e(f"    s_waitcnt vmcnt({len(outstanding)-pos-1})")
        outstanding = outstanding[pos+1:]
        c = "0" if t == 0 else f"v[{S}:{S+3}]"
        e(f"    v_mfma_f32_16x16x32_bf16 v[{S}:{S+3}], v[{ASEL}:{ASEL+3}], v[{d}:{d+3}], {c}")
        if pend is not None:
            e(pend); pend = None
            if pend_reissue is not None:
                issue(pend_reissue); outstanding.append(("L", pend_reissue)); pend_reissue = None
        for kk in (0, 2):
            e(f"    v_lshlrev_b32 v{T}, 16, v{d+kk}")
            e(f"    v_and_b32 v{T+1}, s20, v{d+kk}")
            e(f"    v_lshlrev_b32 v{T+2}, 16, v{d+kk+1}")
            e(f"    v_and_b32 v{T+3}, s20, v{d+kk+1}")
            e(f"    v_pk_mul_f32 v[{T}:{T+1}], v[{T}:{T+1}], v[{T}:{T+1}]")
            e(f"    v_pk_mul_f32 v[{T+2}:{T+3}], v[{T+2}:{T+3}], v[{T+2}:{T+3}]")
            e(f"    v_cvt_pk_bf16_f32 v{d+kk}, v{T}, v{T+1}")
            e(f"    v_cvt_pk_bf16_f32 v{d+kk+1}, v{T+2}, v{T+3}")
        c = "0" if t == 0 else f"v[{Q}:{Q+3}]"
        pend = f"    v_mfma_f32_16x16x32_bf16 v[{Q}:{Q+3}], v[{ASEL}:{ASEL+3}], v[{d}:{d+3}], {c}"
        if n + DEPTH < NL:
            pend_reissue = n + DEPTH
    e("    s_nop 1")
    e(pend)
    if TPW == 1:
        e("    s_nop 7")
    mask = 0
    for l in range(64):
        g, j = l >> 4, l & 15
        if (g & 1) == 0 and (j % LP) == 0:
            mask |= 1 << l
    for k in range(TPW):
        a = ACC + 8 * k
        epilogue(e, a, a + 4, T, LP)
        if NS == 1:
            e(f"    v_mul_f32 v{a}, 0.5, v{a}")
            e(f"    v_cvt_pk_bf16_f32 v{a}, v{a}, v{a}")
    e(f"    s_mov_b32 exec_lo, 0x{mask & 0xffffffff:08x}")
    e(f"    s_mov_b32 exec_hi, 0x{mask >> 32:08x}")
    for k in range(TPW):
        a = ACC + 8 * k
        if NS == 1:
            e(f"    buffer_store_short v{a}, v1, s[16:19], 0 offen offset:{k*SPT*2}")
        else:
            e(f"    buffer_store_dword v{a}, v1, s[16:19], 0 offen offset:{k*SPT*4}")
    e("L_end:")
    e("    s_endpgm")
    kd(e, NAME, max(NV, nvpad), 24)
    if NS > 1 and combine:
        combine_kernel(e, NS)
    return "\n".join(L) + "\n"

if __name__ == "__main__":
    ap = argparse.ArgumentParser()
    ap.add_argument("-o", required=True)
    ap.add_argument("--ns", type=int, default=2)
    ap.add_argument("--tpw", type=int, default=2)
    ap.add_argument("--depth", type=int, default=6)
    ap.add_argument("--wpb", type=int, default=4)
    ap.add_argument("--ld", default="")
    ap.add_argument("--layers", type=int, default=6)
    ap.add_argument("--barrier", action="store_true")
    ap.add_argument("--nocombine", action="store_true")
    ap.add_argument("--nvpad", type=int, default=0)
    ap.add_argument("--xmap", default="mod")
    ap.add_argument("--pf", type=int, default=0)
    ap.add_argument("--barev", type=int, default=0)
    a = ap.parse_args()
    open(a.o, "w").write(gen(a.ns, a.tpw, a.depth, a.wpb, a.ld, a.layers, a.barrier, not a.nocombine, a.nvpad, a.xmap, a.pf, a.barev))
```

```python
import sys, argparse
from gen1 import HEADER, NAME
from gen2 import kd, rnd4, epilogue
from gen3 import NET13, ORDER

B = 16384

def gen(TPW=2, DEPTH=4, WPB=8, layers=6, BAREV=4, xmap="div", NZ=64, flagat=3):
    NS = 2; LP = 8; SPT = 4
    assert TPW in (1, 2, 4)
    ntasks = B // SPT * NS
    nblk = ntasks // (WPB * TPW)
    NL = 13 * TPW
    DEPTH = min(DEPTH, NL)
    WB = TPW * SPT * 104
    nld = (WB + 511) // 512
    LDSW = nld * 512
    ZB = B * 8 // NZ
    assert ZB % 1024 == 0 and NZ <= 64 and NZ <= nblk
    L = []
    e = L.append
    e(HEADER.rstrip())
    NH = 8
    assert WPB >= 8 and NZ == 64
    e(f"; @launch grid=({nblk+NH},1,1) block=({64*WPB},1,1) lds={LDSW*WPB}")
    e('.amdgcn_target "amdgcn-amd-amdhsa--gfx950"')
    e(".text")
    e(f".globl {NAME}")
    e(".p2align 8")
    e(f".type {NAME},@function")
    e(f"{NAME}:")
    T = 2
    ASEL = 8
    ACC = 12
    IDX = ACC + 8 * TPW
    IDXS = 14
    VF = IDX + IDXS * TPW
    D0 = (VF + 1 + 3) // 4 * 4
    NV = D0 + 4 * DEPTH
    e(f"    s_cmp_ge_u32 s2, {nblk+NH}")
    e("    s_cbranch_scc1 L_end")
    e(f"    s_cmp_lt_u32 s2, {NH}")
    e("    s_cbranch_scc1 L_helper")
    e("    s_load_dwordx4 s[4:7], s[0:1], 0")
    e("    s_load_dwordx4 s[36:39], s[0:1], 16")
    e("    s_load_dwordx2 s[28:29], s[0:1], 32     ; ws")
    e("    s_and_b32 s21, s2, 7                 ; x")
    e("    s_lshr_b32 s22, s2, 3")
    e("    s_sub_u32 s22, s22, 1                ; round")
    if xmap == "mod":
        e("    s_and_b32 s23, s21, 1              ; slice c")
        e("    s_lshr_b32 s21, s21, 1             ; u")
    else:
        e("    s_lshr_b32 s23, s21, 2             ; slice c")
        e("    s_and_b32 s21, s21, 3              ; u")
    e("    s_lshl_b32 s22, s22, 2")
    e("    s_add_u32 s22, s22, s21")
    e("    v_and_b32 v1, 63, v0                 ; lane")
    e("    v_lshrrev_b32 v5, 6, v0")
    e(f"    s_mul_i32 s3, s22, {WPB*WB}")
    e(f"    v_mul_u32_u24 v6, {WB}, v5")
    e("    v_lshl_add_u32 v6, v1, 3, v6")
    e("    v_add_u32 v6, s3, v6")
    e("    s_mov_b32 s20, 0xffff0000")
    e(f"    s_mov_b32 s10, {B*104}")
    e("    s_mov_b32 s11, 0x00020000")
    e(f"    s_mov_b32 s14, {100000*256}")
    e("    s_mov_b32 s15, 0x00020000")
    e(f"    s_mov_b32 s30, {B*8}")
    e("    s_mov_b32 s31, 0x00020000")
    e("    s_waitcnt lgkmcnt(0)")
    e("    s_mov_b32 s8, s4")
    e("    s_and_b32 s9, s5, 0xffff")
    for k in range(nld):
        e(f"    buffer_load_dwordx2 v[{D0+2*k}:{D0+2*k+1}], v6, s[8:11], 0 offen offset:{512*k}")
    e("    s_and_b32 s29, s29, 0xffff")
    e("    s_mov_b32 s12, s6")
    e("    s_and_b32 s13, s7, 0xffff")
    e("    s_mov_b32 s16, s36")
    e("    s_and_b32 s17, s37, 0xffff")
    e(f"    s_mov_b32 s18, {B*2}")
    e("    s_mov_b32 s19, 0x00020000")
    e("    s_mov_b32 s24, s38")
    e("    s_and_b32 s25, s39, 0xffff")
    e("    s_mov_b32 s26, 256")
    e("    s_mov_b32 s27, 0x00020000")
    e("    v_and_b32 v2, 15, v0                 ; j")
    e("    v_lshrrev_b32 v3, 5, v1              ; h")
    e("    v_bfe_u32 v4, v1, 4, 1               ; parity")
    e("    v_lshrrev_b32 v7, 3, v2              ; sub")
    e("    v_lshl_add_u32 v7, v3, 1, v7")
    R = D0 + 2 * nld
    e(f"    v_mul_u32_u24 v6, {LDSW}, v5")
    e(f"    v_mul_u32_u24 v{R}, 104, v7")
    e("    v_mul_u32_u24 v4, 52, v4")
    e(f"    v_add3_u32 v{R}, v{R}, v4, v6")
    e("    v_lshl_add_u32 v6, v1, 3, v6")
    e(f"    s_mul_i32 s3, s22, {WPB*TPW*SPT}")
    e(f"    v_mul_u32_u24 v5, {TPW*SPT}, v5")
    e("    v_add3_u32 v7, v7, v5, s3")
    if TPW > 1:
        e(f"    v_and_b32 v4, {TPW-1}, v2")
        e("    v_lshl_add_u32 v1, v4, 2, v7")
    else:
        e("    v_mov_b32 v1, v7")
    sh = (ZB // 8).bit_length() - 1
    e(f"    v_lshrrev_b32 v{VF}, {sh}, v1")
    e(f"    v_lshlrev_b32 v{VF}, 2, v{VF}")
    e("    v_lshrrev_b32 v7, 3, v2              ; m>>3")
    e("    v_cmp_eq_u32 vcc, v7, v3")
    e("    v_and_b32 v4, 1, v2")
    e("    v_lshlrev_b32 v4, 4, v4")
    e("    v_mov_b32 v7, 0x3f80")
    e("    v_lshlrev_b32 v7, v4, v7")
    e("    v_cndmask_b32 v7, 0, v7, vcc")
    e("    v_bfe_u32 v4, v2, 1, 2")
    for r in range(4):
        e(f"    v_cmp_eq_u32 vcc, {r}, v4")
        e("    s_nop 1")
        e(f"    v_cndmask_b32 v{ASEL+r}, 0, v7, vcc")
    e(f"    v_and_b32 v7, {LP-1}, v2")
    e("    v_lshlrev_b32 v7, 4, v7")
    e("    s_lshl_b32 s3, s23, 7")
    e("    v_add_u32 v7, s3, v7                 ; laneoff")
    e("    s_cmp_lg_u32 s23, 0")
    e("    s_cselect_b64 s[32:33], -1, 0")
    LO = 7
    for k in range(nld):
        e(f"    s_waitcnt vmcnt({nld-1-k})")
        e(f"    ds_write_b64 v6, v[{D0+2*k}:{D0+2*k+1}] offset:{512*k}")
    obase = 0
    for k in range(TPW):
        ib = IDX + IDXS * k
        o = k * SPT * 26 - obase
        if o + 12 >= 256:
            e(f"    v_add_u32 v{R}, {o*4}, v{R}")
            obase += o; o = 0
        for q in range(6):
            e(f"    ds_read2_b32 v[{ib+2*q}:{ib+2*q+1}], v{R} offset0:{o+2*q} offset1:{o+2*q+1}")
        e(f"    ds_read_b32 v{ib+12}, v{R} offset:{(o+12)*4}")
    phys = []
    for k in range(TPW):
        ib = IDX + IDXS * k
        e(f"    s_waitcnt lgkmcnt({min(7*(TPW-1-k), 15)})")
        p = list(range(ib, ib + 13)); spare = ib + 13
        for Ly in NET13[:layers]:
            for a, b in Ly:
                e(f"    v_min_u32 v{spare}, v{p[a]}, v{p[b]}")
                e(f"    v_max_u32 v{p[b]}, v{p[a]}, v{p[b]}")
                p[a], spare = spare, p[a]
        phys.append([p[i] for i in ORDER[layers]])
    e("; @MID")
    items = [(k, t) for t in range(13) for k in range(TPW)]
    def issue(n):
        k, t = items[n]
        d = D0 + 4 * (n % DEPTH)
        e(f"    v_lshl_add_u32 v{d}, v{phys[k][t]}, 8, v{LO}")
        e(f"    buffer_load_dwordx4 v[{d}:{d+3}], v{d}, s[12:15], 0 offen")
    for n in range(DEPTH):
        issue(n)
    outstanding = [("L", n) for n in range(DEPTH)]
    pend = None
    pend_reissue = None
    for n in range(NL):
        k, t = items[n]
        a = ACC + 8 * k
        S, Q = a, a + 4
        d = D0 + 4 * (n % DEPTH)
        pos = outstanding.index(("L", n))
        if BAREV and n > 0 and n % BAREV == 0 and n + DEPTH <= NL:
            e("    s_barrier")
        e(f"    s_waitcnt vmcnt({len(outstanding)-pos-1})")
        outstanding = outstanding[pos+1:]
        c = "0" if t == 0 else f"v[{S}:{S+3}]"
        e(f"    v_mfma_f32_16x16x32_bf16 v[{S}:{S+3}], v[{ASEL}:{ASEL+3}], v[{d}:{d+3}], {c}")
        if pend is not None:
            e(pend); pend = None
            if pend_reissue is not None:
                issue(pend_reissue); outstanding.append(("L", pend_reissue)); pend_reissue = None
        if n == NL - flagat:
            e(f"    buffer_load_dword v{VF}, v{VF}, s[24:27], 0 offen sc1")
            outstanding.append(("F", 0))
        for kk in (0, 2):
            e(f"    v_lshlrev_b32 v{T}, 16, v{d+kk}")
            e(f"    v_and_b32 v{T+1}, s20, v{d+kk}")
            e(f"    v_lshlrev_b32 v{T+2}, 16, v{d+kk+1}")
            e(f"    v_and_b32 v{T+3}, s20, v{d+kk+1}")
            e(f"    v_pk_mul_f32 v[{T}:{T+1}], v[{T}:{T+1}], v[{T}:{T+1}]")
            e(f"    v_pk_mul_f32 v[{T+2}:{T+3}], v[{T+2}:{T+3}], v[{T+2}:{T+3}]")
            e(f"    v_cvt_pk_bf16_f32 v{d+kk}, v{T}, v{T+1}")
            e(f"    v_cvt_pk_bf16_f32 v{d+kk+1}, v{T+2}, v{T+3}")
        c = "0" if t == 0 else f"v[{Q}:{Q+3}]"
        pend = f"    v_mfma_f32_16x16x32_bf16 v[{Q}:{Q+3}], v[{ASEL}:{ASEL+3}], v[{d}:{d+3}], {c}"
        if n + DEPTH < NL:
            pend_reissue = n + DEPTH
    e("    s_nop 1")
    e(pend)
    if TPW == 1:
        e("    s_nop 7")
    for k in range(TPW):
        a = ACC + 8 * k
        epilogue(e, a, a + 4, T, LP)
    M = ACC
    for k in range(1, TPW):
        mk = sum(1 << l for l in range(64) if (l & (TPW - 1)) == k)
        e(f"    s_mov_b32 s36, 0x{mk & 0xffffffff:08x}")
        e(f"    s_mov_b32 s37, 0x{mk >> 32:08x}")
        e(f"    v_cndmask_b32 v{M}, v{M}, v{ACC+8*k}, s[36:37]")
    e(f"    v_cmp_u_f32 vcc, v{M}, v{M}")
    e("    v_mov_b32 v2, 0x7fc00000")
    e("    s_nop 0")
    e(f"    v_cndmask_b32 v{M}, v{M}, v2, vcc")
    e(f"    v_cndmask_b32 v2, v{M}, -1, s[32:33]")
    e(f"    v_cndmask_b32 v3, -1, v{M}, s[32:33]")
    e("    v_lshlrev_b32 v4, 3, v1")
    e("    v_lshlrev_b32 v1, 1, v1")
    e("    s_waitcnt vmcnt(0)")
    e(f"    v_cmp_eq_u32 vcc, 0, v{VF}")
    e("    s_cmp_lg_u64 vcc, 0")
    e("    s_cbranch_scc1 L_slow")
    e("L_go:")
    mask = sum(1 << l for l in range(64) if ((l >> 4) & 1) == 0 and (l & 7) < TPW)
    e(f"    s_mov_b32 exec_lo, 0x{mask & 0xffffffff:08x}")
    e(f"    s_mov_b32 exec_hi, 0x{mask >> 32:08x}")
    e("    buffer_atomic_and_x2 v[2:3], v4, s[28:31], 0 offen sc0 sc1")
    e("    s_waitcnt vmcnt(0)")
    e("    v_cndmask_b32 v2, v3, v2, s[32:33]")
    e("    v_cmp_ne_u32 vcc, -1, v2")
    e(f"    v_add_f32 v2, v2, v{M}")
    e("    v_mul_f32 v2, 0.5, v2")
    e("    v_cvt_pk_bf16_f32 v2, v2, v2")
    e("    s_and_b64 exec, exec, vcc")
    e("    s_cbranch_execz L_fin")
    e("    buffer_store_short v2, v1, s[16:19], 0 offen")
    e("L_fin:")
    e("L_end:")
    e("    s_endpgm")
    e("L_slow:")
    e(f"    v_lshrrev_b32 v5, {sh+1}, v1          ; v1 = sample*2")
    e("    v_lshlrev_b32 v5, 2, v5")
    e("L_poll:")
    e("    s_sleep 8")
    e(f"    v_mov_b32 v{VF}, 0")
    e("    s_mov_b64 exec, 1")
    e(f"    buffer_atomic_or v{VF}, v5, s[24:27], 0 offen sc0 sc1")
    e("    s_waitcnt vmcnt(0)")
    e(f"    v_cmp_eq_u32 vcc, 0, v{VF}")
    e("    s_mov_b64 exec, -1")
    e("    s_cmp_lg_u64 vcc, 0")
    e("    s_cbranch_scc1 L_poll")
    e("    s_branch L_go")
    e("L_helper:")
    e("    s_load_dwordx2 s[24:25], s[0:1], 24     ; dbg")
    e("    s_load_dwordx2 s[28:29], s[0:1], 32     ; ws")
    e("    v_lshrrev_b32 v5, 6, v0")
    e("    v_and_b32 v1, 63, v0")
    e("    v_readfirstlane_b32 s34, v5")
    for r in range(4):
        e(f"    v_mov_b32 v{8+r}, -1")
    e("    s_cmp_ge_u32 s34, 8")
    e("    s_cbranch_scc1 L_end")
    e("    s_lshl_b32 s3, s2, 3")
    e("    s_add_u32 s3, s3, s34")
    e(f"    s_mul_i32 s35, s3, {ZB}")
    e("    v_lshlrev_b32 v2, 4, v1")
    e("    v_add_u32 v2, s35, v2")
    e("    s_lshl_b32 s3, s3, 2")
    e("    v_mov_b32 v3, s3")
    e("    v_mov_b32 v4, 1")
    e(f"    s_mov_b32 s30, {B*8}")
    e("    s_mov_b32 s31, 0x00020000")
    e("    s_mov_b32 s26, 256")
    e("    s_mov_b32 s27, 0x00020000")
    e("    s_waitcnt lgkmcnt(0)")
    e("    s_and_b32 s29, s29, 0xffff")
    e("    s_and_b32 s25, s25, 0xffff")
    for k in range(ZB // 1024):
        e(f"    buffer_store_dwordx4 v[8:11], v2, s[28:31], 0 offen offset:{1024*k} sc1")
    e("    s_mov_b64 exec, 1")
    e("    s_waitcnt vmcnt(0)")
    e("    buffer_store_dword v4, v3, s[24:27], 0 offen sc1")
    e("    s_endpgm")
    kd(e, NAME, NV, 40)
    return "\n".join(L) + "\n"

if __name__ == "__main__":
    ap = argparse.ArgumentParser()
    ap.add_argument("-o", required=True)
    ap.add_argument("--tpw", type=int, default=2)
    ap.add_argument("--depth", type=int, default=4)
    ap.add_argument("--wpb", type=int, default=8)
    ap.add_argument("--layers", type=int, default=6)
    ap.add_argument("--barev", type=int, default=4)
    ap.add_argument("--xmap", default="div")
    ap.add_argument("--nz", type=int, default=64)
    ap.add_argument("--flagat", type=int, default=3)
    a = ap.parse_args()
    open(a.o, "w").write(gen(a.tpw, a.depth, a.wpb, a.layers, a.barev, a.xmap, a.nz, a.flagat))
```

```python
import sys, argparse
from gen1 import HEADER, NAME
from gen2 import kd

B = 16384
NETS = {
 24: ([(0, 11, 10), (7, 9, 2), (5, 6, 4), (1, 3, 8), (9, 12, 11), (6, 12, 3), (2, 10, 4), (0, 5, 1)],
      [0, 5, 7, 9, 6, 1, 12, 2, 3, 11, 8, 10, 4]),
 30: ([(0, 11, 10), (7, 9, 2), (5, 6, 4), (1, 3, 8), (9, 12, 11), (6, 12, 3), (2, 10, 4), (0, 5, 1), (2, 11, 8), (7, 9, 1)],
      [0, 7, 5, 9, 6, 1, 12, 2, 3, 11, 10, 8, 4]),
 36: ([(0, 11, 10), (7, 9, 2), (5, 6, 4), (1, 3, 8), (9, 12, 11), (6, 12, 3), (2, 10, 4), (0, 5, 1), (2, 11, 8), (7, 9, 1), (1, 12, 2), (5, 9, 6)],
      [0, 7, 5, 9, 6, 1, 12, 2, 3, 11, 10, 8, 4]),
 42: ([(0, 11, 10), (7, 9, 2), (5, 6, 4), (1, 3, 8), (9, 12, 11), (6, 12, 3), (2, 10, 4), (0, 5, 1), (2, 11, 8), (7, 9, 1), (1, 12, 2), (5, 9, 6), (3, 11, 10), (0, 7, 5)],
      [0, 7, 5, 9, 6, 1, 12, 2, 3, 11, 10, 8, 4]),
}

def schedule(net, order):
    n = len(net)
    deps = [set() for _ in range(n)]
    last = {}
    for i, op in enumerate(net):
        for p in op:
            if p in last: deps[i].add(last[p])
            last[p] = i
    rank = {p: r for r, p in enumerate(order)}
    prio = [99] * n
    for p, i in last.items():
        prio[i] = min(prio[i], rank[p])
    for i in reversed(range(n)):
        for d in deps[i]:
            prio[d] = min(prio[d], prio[i])
    done = []; res = []
    while len(res) < n:
        c = [i for i in range(n) if i not in done and deps[i] <= set(done)]
        i = min(c, key=lambda i: (prio[i], i))
        done.append(i); res.append(net[i])
    return res

def gen(DEPTH=4, WPB=8, netc=36, BAREV=4, xmap="div", flagat=3, early=True):
    NS = 2; LP = 8; SPT = 4; TPW = 2; NZ = 64; NH = 8
    ntasks = B // SPT * NS
    nblk = ntasks // (WPB * TPW)
    NL = 13 * TPW
    WB = TPW * SPT * 104
    nld = 2
    LDSW = 1024
    ZB = B * 8 // NZ
    assert WPB >= 8 and DEPTH >= 4
    net, order = NETS[netc]
    net = schedule(net, order)
    L = []
    e = L.append
    e(HEADER.rstrip())
    e(f"; @launch grid=({nblk+NH},1,1) block=({64*WPB},1,1) lds={LDSW*WPB}")
    e('.amdgcn_target "amdgcn-amd-amdhsa--gfx950"')
    e(".text")
    e(f".globl {NAME}")
    e(".p2align 8")
    e(f".type {NAME},@function")
    e(f"{NAME}:")
    T = 2
    LO = 7
    ASEL = 8
    ACC = 12
    IDX = 28
    SP = [IDX + 26, IDX + 27]
    VF = 6
    D0 = 56
    NV = D0 + 4 * DEPTH
    e(f"    s_cmp_ge_u32 s2, {nblk+NH}")
    e("    s_cbranch_scc1 L_end")
    e(f"    s_cmp_lt_u32 s2, {NH}")
    e("    s_cbranch_scc1 L_helper")
    e("    s_load_dwordx4 s[4:7], s[0:1], 0")
    e("    s_load_dwordx4 s[36:39], s[0:1], 16")
    e("    s_load_dwordx2 s[28:29], s[0:1], 32     ; ws")
    e("    s_and_b32 s21, s2, 7                 ; x")
    e("    s_lshr_b32 s22, s2, 3")
    e("    s_sub_u32 s22, s22, 1                ; round")
    if xmap == "mod":
        e("    s_and_b32 s23, s21, 1              ; slice c")
        e("    s_lshr_b32 s21, s21, 1             ; u")
    else:
        e("    s_lshr_b32 s23, s21, 2             ; slice c")
        e("    s_and_b32 s21, s21, 3              ; u")
    e("    s_lshl_b32 s22, s22, 2")
    e("    s_add_u32 s22, s22, s21")
    e("    v_and_b32 v1, 63, v0                 ; lane")
    e("    v_lshrrev_b32 v5, 6, v0")
    e(f"    s_mul_i32 s3, s22, {WPB*WB}")
    e(f"    v_mul_u32_u24 v6, {WB}, v5")
    e("    v_lshl_add_u32 v6, v1, 3, v6")
    e("    v_add_u32 v6, s3, v6")
    e(f"    s_mov_b32 s10, {B*104}")
    e("    s_mov_b32 s11, 0x00020000")
    R = D0 + 4
    W = D0 + 5
    e("    v_and_b32 v2, 15, v0                 ; j")
    e("    v_lshrrev_b32 v3, 5, v1              ; h")
    e("    v_bfe_u32 v4, v1, 4, 1               ; parity")
    e("    v_lshrrev_b32 v7, 3, v2              ; sub")
    e("    v_lshl_add_u32 v7, v3, 1, v7")
    e(f"    v_lshlrev_b32 v{W}, 10, v5")
    e(f"    v_mul_u32_u24 v{R}, 104, v7")
    e("    v_mul_u32_u24 v4, 52, v4")
    e(f"    v_add3_u32 v{R}, v{R}, v4, v{W}")
    e(f"    v_lshl_add_u32 v{W}, v1, 3, v{W}")
    e("    s_waitcnt lgkmcnt(0)")
    e("; @M0")
    e("    s_mov_b32 s8, s4")
    e("    s_and_b32 s9, s5, 0xffff")
    for k in range(nld):
        e(f"    buffer_load_dwordx2 v[{D0+2*k}:{D0+2*k+1}], v6, s[8:11], 0 offen offset:{512*k}")
    e("    s_mov_b32 s20, 0xffff0000")
    e("    s_mov_b32 s12, s6")
    e("    s_and_b32 s13, s7, 0xffff")
    e(f"    s_mov_b32 s14, {100000*256}")
    e("    s_mov_b32 s15, 0x00020000")
    e("    s_and_b32 s29, s29, 0xffff")
    e(f"    s_mov_b32 s30, {B*8}")
    e("    s_mov_b32 s31, 0x00020000")
    e("    s_mov_b32 s16, s36")
    e("    s_and_b32 s17, s37, 0xffff")
    e(f"    s_mov_b32 s18, {B*2}")
    e("    s_mov_b32 s19, 0x00020000")
    e("    s_mov_b32 s24, s38")
    e("    s_and_b32 s25, s39, 0xffff")
    e("    s_mov_b32 s26, 256")
    e("    s_mov_b32 s27, 0x00020000")
    e("    v_lshrrev_b32 v7, 3, v2              ; m>>3")
    e("    v_cmp_eq_u32 vcc, v7, v3")
    e("    v_and_b32 v4, 1, v2")
    e("    v_lshlrev_b32 v4, 4, v4")
    e("    v_mov_b32 v7, 0x3f80")
    e("    v_lshlrev_b32 v7, v4, v7")
    e("    v_cndmask_b32 v7, 0, v7, vcc")
    e("    v_bfe_u32 v4, v2, 1, 2")
    for r in range(4):
        e(f"    v_cmp_eq_u32 vcc, {r}, v4")
        e("    s_nop 1")
        e(f"    v_cndmask_b32 v{ASEL+r}, 0, v7, vcc")
    e(f"    s_mul_i32 s3, s22, {WPB*TPW*SPT}")
    e("    v_lshl_add_u32 v5, v5, 3, s3")
    e("    v_and_b32 v4, 3, v2")
    e("    v_lshl_add_u32 v5, v4, 1, v5         ; + 2n  ((n>>1)*4+(n&1)*2 == 2n)")
    e("    v_add_u32 v1, v5, v3")
    e(f"    v_lshrrev_b32 v{VF}, 8, v1")
    e(f"    v_lshlrev_b32 v{VF}, 2, v{VF}")
    e(f"    v_and_b32 v{LO}, {LP-1}, v2")
    e(f"    v_lshlrev_b32 v{LO}, 4, v{LO}")
    e("    s_lshl_b32 s3, s23, 7")
    e(f"    v_add_u32 v{LO}, s3, v{LO}             ; laneoff")
    e("    s_cmp_lg_u32 s23, 0")
    e("    s_cselect_b64 s[32:33], -1, 0")
    for k in range(nld):
        e(f"    s_waitcnt vmcnt({nld-1-k})")
        e(f"    ds_write_b64 v{W}, v[{D0+2*k}:{D0+2*k+1}] offset:{512*k}")
    e("; @M1")
    lists = []
    for k in range(TPW):
        o = k * SPT * 26
        base = IDX + 14 * k
        for q in range(6):
            e(f"    ds_read2_b32 v[{base+2*q}:{base+2*q+1}], v{R} offset0:{o+2*q} offset1:{o+2*q+1}")
        e(f"    ds_read_b32 v{base+12}, v{R} offset:{(o+12)*4}")
        lists.append(list(range(base, base + 13)))
    spares = [IDX + 13, IDX + 27]
    items = [(0, 0), (0, 1), (1, 0), (1, 1)] + [(k, t) for t in range(2, 13) for k in range(TPW)]
    phys = [None, None]
    issued = []
    def issue(n, reg=None):
        k, t = items[n]
        d = D0 + 4 * (n % DEPTH)
        r = reg if reg is not None else phys[k][t]
        e(f"    v_lshl_add_u32 v{d}, v{r}, 8, v{LO}")
        e(f"    buffer_load_dwordx4 v[{d}:{d+3}], v{d}, s[12:15], 0 offen")
        issued.append(n)
    for k in range(TPW):
        e(f"    s_waitcnt lgkmcnt({7*(TPW-1-k)})")
        p = list(lists[k])
        lasttouch = {}
        for i, op in enumerate(net):
            for x in op: lasttouch[x] = i
        nexto = 0
        for i, op in enumerate(net):
            a, b, c = op
            t1, t2 = spares
            e(f"    v_med3_u32 v{t1}, v{p[a]}, v{p[b]}, v{p[c]}")
            e(f"    v_max3_u32 v{t2}, v{p[a]}, v{p[b]}, v{p[c]}")
            e(f"    v_min3_u32 v{p[a]}, v{p[a]}, v{p[b]}, v{p[c]}")
            spares = [p[b], p[c]]
            p[b], p[c] = t1, t2
            while early and nexto < 2 and lasttouch.get(order[nexto], -1) <= i:
                if k == 0 and nexto == 0:
                    e("; @MID")
                issue(2 * k + nexto, p[order[nexto]])
                nexto += 1
        phys[k] = [p[x] for x in order]
        while nexto < 2 and early:
            issue(2 * k + nexto); nexto += 1
    if not early:
        e("; @MID")
    for n in range(DEPTH):
        if n not in issued:
            issue(n)
    assert issued == list(range(DEPTH)), issued
    outstanding = [("L", n) for n in range(DEPTH)]
    pend = None
    pend_reissue = None
    BS = None
    for n in range(NL):
        k, t = items[n]
        a = ACC + 8 * k
        S, Q = a, a + 4
        d = D0 + 4 * (n % DEPTH)
        pos = outstanding.index(("L", n))
        if BAREV and n > 0 and n % BAREV == 0 and n + DEPTH <= NL:
            e("    s_barrier")
        e(f"    s_waitcnt vmcnt({len(outstanding)-pos-1})")
        outstanding = outstanding[pos+1:]
        c = "0" if t == 0 else f"v[{S}:{S+3}]"
        e(f"    v_mfma_f32_16x16x32_bf16 v[{S}:{S+3}], v[{ASEL}:{ASEL+3}], v[{d}:{d+3}], {c}")
        if pend is not None:
            e(pend); pend = None
            if pend_reissue is not None:
                issue(pend_reissue); outstanding.append(("L", pend_reissue)); pend_reissue = None
        if n == NL - flagat:
            e(f"    buffer_load_dword v{VF}, v{VF}, s[24:27], 0 offen sc1")
            outstanding.append(("F", 0))
        for kk in (0, 2):
            e(f"    v_lshlrev_b32 v{T}, 16, v{d+kk}")
            e(f"    v_and_b32 v{T+1}, s20, v{d+kk}")
            e(f"    v_lshlrev_b32 v{T+2}, 16, v{d+kk+1}")
            e(f"    v_and_b32 v{T+3}, s20, v{d+kk+1}")
            e(f"    v_pk_mul_f32 v[{T}:{T+1}], v[{T}:{T+1}], v[{T}:{T+1}]")
            e(f"    v_pk_mul_f32 v[{T+2}:{T+3}], v[{T+2}:{T+3}], v[{T+2}:{T+3}]")
            e(f"    v_cvt_pk_bf16_f32 v{d+kk}, v{T}, v{T+1}")
            e(f"    v_cvt_pk_bf16_f32 v{d+kk+1}, v{T+2}, v{T+3}")
        c = "0" if t == 0 else f"v[{Q}:{Q+3}]"
        pend = f"    v_mfma_f32_16x16x32_bf16 v[{Q}:{Q+3}], v[{ASEL}:{ASEL+3}], v[{d}:{d+3}], {c}"
        if n + DEPTH < NL:
            pend_reissue = n + DEPTH
        if n == NL - 3:
            assert len(issued) == NL
            BS = IDX
            AD = IDX + 4
            SL = IDX + 8
            e(f"    v_and_b32 v{SL}, 15, v0               ; n")
            e(f"    v_bfe_u32 v{SL+1}, v0, 5, 1           ; q>>1")
            e(f"    v_mov_b32 v{SL+2}, 0x3f803f80")
            e(f"    v_cmp_eq_u32 vcc, v{SL}, v{SL+1}")
            e(f"    v_add_u32 v{SL+1}, 2, v{SL+1}")
            e("    s_nop 0")
            e(f"    v_cndmask_b32 v{BS}, 0, v{SL+2}, vcc")
            e(f"    v_cndmask_b32 v{BS+1}, 0, v{SL+2}, vcc")
            e(f"    v_cmp_eq_u32 vcc, v{SL}, v{SL+1}       ; n == 2+(q>>1) (task 1)")
            e(f"    v_lshlrev_b32 v{SL}, 3, v1")
            e("    v_lshlrev_b32 v1, 1, v1")
            e(f"    v_cndmask_b32 v{BS+2}, 0, v{SL+2}, vcc")
            e(f"    v_cndmask_b32 v{BS+3}, 0, v{SL+2}, vcc")
    e("    s_nop 1")
    e(pend)
    e("; @M2")
    def unpack(dst, src):
        e(f"    v_lshlrev_b32 v{dst}, 16, v{src}")
        e(f"    v_and_b32 v{dst+1}, s20, v{src}")
    for k in range(TPW):
        S, Q = ACC + 8 * k, ACC + 8 * k + 4
        e(f"    v_cvt_pk_bf16_f32 v{T}, v{S}, v{S+1}")
        e(f"    v_cvt_pk_bf16_f32 v{T+1}, v{S+2}, v{S+3}")
        unpack(S, T); unpack(S + 2, T + 1)
        e(f"    v_pk_mul_f32 v[{S}:{S+1}], v[{S}:{S+1}], v[{S}:{S+1}]")
        e(f"    v_pk_mul_f32 v[{S+2}:{S+3}], v[{S+2}:{S+3}], v[{S+2}:{S+3}]")
        e(f"    v_cvt_pk_bf16_f32 v{T}, v{S}, v{S+1}")
        e(f"    v_cvt_pk_bf16_f32 v{T+1}, v{S+2}, v{S+3}")
        e(f"    v_cvt_pk_bf16_f32 v{T+2}, v{Q}, v{Q+1}")
        e(f"    v_cvt_pk_bf16_f32 v{T+3}, v{Q+2}, v{Q+3}")
        unpack(S, T); unpack(S + 2, T + 1)
        unpack(Q, T + 2); unpack(Q + 2, T + 3)
        e(f"    v_pk_add_f32 v[{S}:{S+1}], v[{S}:{S+1}], v[{Q}:{Q+1}] neg_lo:[0,1] neg_hi:[0,1]")
        e(f"    v_pk_add_f32 v[{S+2}:{S+3}], v[{S+2}:{S+3}], v[{Q+2}:{Q+3}] neg_lo:[0,1] neg_hi:[0,1]")
        e(f"    v_cvt_pk_bf16_f32 v{AD+2*k}, v{S}, v{S+1}")
        e(f"    v_cvt_pk_bf16_f32 v{AD+2*k+1}, v{S+2}, v{S+3}")
    M = ACC
    e("    s_waitcnt vmcnt(0)")
    e(f"    v_cmp_eq_u32 vcc, 0, v{VF}")
    e(f"    v_mfma_f32_16x16x32_bf16 v[{M}:{M+3}], v[{AD}:{AD+3}], v[{BS}:{BS+3}], 0")
    e("    s_cmp_lg_u64 vcc, 0")
    e("    s_cbranch_scc1 L_slow")
    e("L_go:")
    e("    v_mov_b32 v4, 0x7fc00000")
    e("    s_nop 4")
    e(f"    v_pk_add_f32 v[{M}:{M+1}], v[{M}:{M+1}], v[{M+2}:{M+3}]")
    e(f"    v_add_f32 v{M}, v{M}, v{M+1}")
    e(f"    v_mov_b32 v{M+1}, v{M}")
    e("    s_nop 1")
    e(f"    v_permlane16_swap_b32 v{M}, v{M+1}")
    e(f"    v_add_f32 v{M}, v{M}, v{M+1}")
    e(f"    v_cmp_u_f32 vcc, v{M}, v{M}")
    e("    s_mov_b32 exec_lo, 0x0000000f")
    e("    s_mov_b32 exec_hi, 0x0000000f")
    e(f"    v_cndmask_b32 v{M}, v{M}, v4, vcc")
    e(f"    v_cndmask_b32 v2, v{M}, -1, s[32:33]")
    e(f"    v_cndmask_b32 v3, -1, v{M}, s[32:33]")
    e("; @M3")
    e(f"    buffer_atomic_and_x2 v[2:3], v{SL}, s[28:31], 0 offen sc0 sc1")
    e("    s_waitcnt vmcnt(0)")
    e("    v_cndmask_b32 v2, v3, v2, s[32:33]")
    e("    v_cmp_ne_u32 vcc, -1, v2")
    e(f"    v_add_f32 v2, v2, v{M}")
    e("    v_mul_f32 v2, 0.5, v2")
    e("    v_cvt_pk_bf16_f32 v2, v2, v2")
    e("    s_and_b64 exec, exec, vcc")
    e("    s_cbranch_execz L_fin")
    e("    buffer_store_short v2, v1, s[16:19], 0 offen")
    e("L_fin:")
    e("L_end:")
    e("    s_endpgm")
    e("L_slow:")
    e("    v_lshrrev_b32 v5, 9, v1               ; v1 = sample*2")
    e("    v_lshlrev_b32 v5, 2, v5")
    e("L_poll:")
    e("    s_sleep 8")
    e(f"    v_mov_b32 v{VF}, 0")
    e("    s_mov_b64 exec, 1")
    e(f"    buffer_atomic_or v{VF}, v5, s[24:27], 0 offen sc0 sc1")
    e("    s_waitcnt vmcnt(0)")
    e(f"    v_cmp_eq_u32 vcc, 0, v{VF}")
    e("    s_mov_b64 exec, -1")
    e("    s_cmp_lg_u64 vcc, 0")
    e("    s_cbranch_scc1 L_poll")
    e("    s_branch L_go")
    e("L_helper:")
    e("    s_load_dwordx2 s[24:25], s[0:1], 24     ; dbg")
    e("    s_load_dwordx2 s[28:29], s[0:1], 32     ; ws")
    e("    v_lshrrev_b32 v5, 6, v0")
    e("    v_and_b32 v1, 63, v0")
    e("    v_readfirstlane_b32 s34, v5")
    for r in range(4):
        e(f"    v_mov_b32 v{8+r}, -1")
    e("    s_cmp_ge_u32 s34, 8")
    e("    s_cbranch_scc1 L_end")
    e("    s_lshl_b32 s3, s2, 3")
    e("    s_add_u32 s3, s3, s34")
    e(f"    s_mul_i32 s35, s3, {ZB}")
    e("    v_lshlrev_b32 v2, 4, v1")
    e("    v_add_u32 v2, s35, v2")
    e("    s_lshl_b32 s3, s3, 2")
    e("    v_mov_b32 v3, s3")
    e("    v_mov_b32 v4, 1")
    e(f"    s_mov_b32 s30, {B*8}")
    e("    s_mov_b32 s31, 0x00020000")
    e("    s_mov_b32 s26, 256")
    e("    s_mov_b32 s27, 0x00020000")
    e("    s_waitcnt lgkmcnt(0)")
    e("    s_and_b32 s29, s29, 0xffff")
    e("    s_and_b32 s25, s25, 0xffff")
    for k in range(ZB // 1024):
        e(f"    buffer_store_dwordx4 v[8:11], v2, s[28:31], 0 offen offset:{1024*k} sc1")
    e("    s_mov_b64 exec, 1")
    e("    s_waitcnt vmcnt(0)")
    e("    buffer_store_dword v4, v3, s[24:27], 0 offen sc1")
    e("    s_endpgm")
    kd(e, NAME, NV, 40)
    return "\n".join(L) + "\n"

if __name__ == "__main__":
    ap = argparse.ArgumentParser()
    ap.add_argument("-o", required=True)
    ap.add_argument("--depth", type=int, default=4)
    ap.add_argument("--wpb", type=int, default=8)
    ap.add_argument("--net", type=int, default=36)
    ap.add_argument("--barev", type=int, default=4)
    ap.add_argument("--xmap", default="div")
    ap.add_argument("--flagat", type=int, default=3)
    ap.add_argument("--noearly", action="store_true")
    a = ap.parse_args()
    open(a.o, "w").write(gen(a.depth, a.wpb, a.net, a.barev, a.xmap, a.flagat, not a.noearly))
```

```python
import sys, argparse
from gen1 import HEADER, NAME
from gen2 import kd

B = 16384
NETS = {
 24: ([(0, 11, 10), (7, 9, 2), (5, 6, 4), (1, 3, 8), (9, 12, 11), (6, 12, 3), (2, 10, 4), (0, 5, 1)],
      [0, 5, 7, 9, 6, 1, 12, 2, 3, 11, 8, 10, 4]),
 30: ([(0, 11, 10), (7, 9, 2), (5, 6, 4), (1, 3, 8), (9, 12, 11), (6, 12, 3), (2, 10, 4), (0, 5, 1), (2, 11, 8), (7, 9, 1)],
      [0, 7, 5, 9, 6, 1, 12, 2, 3, 11, 10, 8, 4]),
 36: ([(0, 11, 10), (7, 9, 2), (5, 6, 4), (1, 3, 8), (9, 12, 11), (6, 12, 3), (2, 10, 4), (0, 5, 1), (2, 11, 8), (7, 9, 1), (1, 12, 2), (5, 9, 6)],
      [0, 7, 5, 9, 6, 1, 12, 2, 3, 11, 10, 8, 4]),
 42: ([(0, 11, 10), (7, 9, 2), (5, 6, 4), (1, 3, 8), (9, 12, 11), (6, 12, 3), (2, 10, 4), (0, 5, 1), (2, 11, 8), (7, 9, 1), (1, 12, 2), (5, 9, 6), (3, 11, 10), (0, 7, 5)],
      [0, 7, 5, 9, 6, 1, 12, 2, 3, 11, 10, 8, 4]),
}

def schedule(net, order):
    n = len(net)
    deps = [set() for _ in range(n)]
    last = {}
    for i, op in enumerate(net):
        for p in op:
            if p in last: deps[i].add(last[p])
            last[p] = i
    rank = {p: r for r, p in enumerate(order)}
    prio = [99] * n
    for p, i in last.items():
        prio[i] = min(prio[i], rank[p])
    for i in reversed(range(n)):
        for d in deps[i]:
            prio[d] = min(prio[d], prio[i])
    done = []; res = []
    while len(res) < n:
        c = [i for i in range(n) if i not in done and deps[i] <= set(done)]
        i = min(c, key=lambda i: (prio[i], i))
        done.append(i); res.append(net[i])
    return res

def gen(DEPTH=4, WPB=8, netc=36, BAREV=4, xmap="div", flagat=3, early=True, touch=False):
    NS = 2; LP = 8; SPT = 4; TPW = 2; NZ = 64; NH = 8
    ntasks = B // SPT * NS
    nblk = ntasks // (WPB * TPW)
    NL = 13 * TPW
    WB = TPW * SPT * 104
    nld = 2
    LDSW = 1024
    ZB = B * 8 // NZ
    assert WPB >= 8 and DEPTH >= 4
    net, order = NETS[netc]
    net = schedule(net, order)
    L = []
    e = L.append
    e(HEADER.rstrip())
    e(f"; @launch grid=({nblk+NH},1,1) block=({64*WPB},1,1) lds={LDSW*WPB}")
    e('.amdgcn_target "amdgcn-amd-amdhsa--gfx950"')
    e(".text")
    e(f".globl {NAME}")
    e(".p2align 8")
    e(f".type {NAME},@function")
    e(f"{NAME}:")
    T = 2
    LO = 7
    ASEL = 8
    ACC = 12
    IDX = 28
    SP = [IDX + 26, IDX + 27]
    VF = 6
    D0 = 56
    NV = D0 + 4 * DEPTH
    e(f"    s_cmp_ge_u32 s2, {nblk+NH}")
    e("    s_cbranch_scc1 L_end")
    e(f"    s_cmp_lt_u32 s2, {NH}")
    e("    s_cbranch_scc1 L_helper")
    e("    s_load_dwordx4 s[4:7], s[0:1], 0")
    e("    s_load_dwordx4 s[36:39], s[0:1], 16")
    e("    s_load_dwordx2 s[28:29], s[0:1], 32     ; ws")
    e("    s_and_b32 s21, s2, 7                 ; x")
    e("    s_lshr_b32 s22, s2, 3")
    e("    s_sub_u32 s22, s22, 1                ; round")
    if xmap == "mod":
        e("    s_and_b32 s23, s21, 1              ; slice c")
        e("    s_lshr_b32 s21, s21, 1             ; u")
    else:
        e("    s_lshr_b32 s23, s21, 2             ; slice c")
        e("    s_and_b32 s21, s21, 3              ; u")
    e("    s_lshl_b32 s22, s22, 2")
    e("    s_add_u32 s22, s22, s21")
    e("    v_and_b32 v1, 63, v0                 ; lane")
    e("    v_lshrrev_b32 v5, 6, v0")
    e(f"    s_mul_i32 s3, s22, {WPB*WB}")
    e(f"    v_mul_u32_u24 v6, {WB}, v5")
    if touch:
        e("    v_readfirstlane_b32 s34, v5")
    e("    v_lshl_add_u32 v6, v1, 3, v6")
    e("    v_add_u32 v6, s3, v6")
    e(f"    s_mov_b32 s10, {B*104}")
    e("    s_mov_b32 s11, 0x00020000")
    R = D0 + 4
    W = D0 + 5
    e("    v_and_b32 v2, 15, v0                 ; j")
    e("    v_lshrrev_b32 v3, 5, v1              ; h")
    e("    v_bfe_u32 v4, v1, 4, 1               ; parity")
    e("    v_lshrrev_b32 v7, 3, v2              ; sub")
    e("    v_lshl_add_u32 v7, v3, 1, v7")
    e(f"    v_lshlrev_b32 v{W}, 10, v5")
    e(f"    v_mul_u32_u24 v{R}, 104, v7")
    e("    v_mul_u32_u24 v4, 52, v4")
    e(f"    v_add3_u32 v{R}, v{R}, v4, v{W}")
    e(f"    v_lshl_add_u32 v{W}, v1, 3, v{W}")
    e("    s_waitcnt lgkmcnt(0)")
    e("; @M0")
    e("    s_mov_b32 s8, s4")
    e("    s_and_b32 s9, s5, 0xffff")
    for k in range(nld):
        e(f"    buffer_load_dwordx2 v[{D0+2*k}:{D0+2*k+1}], v6, s[8:11], 0 offen offset:{512*k}")
    e("    s_mov_b32 s20, 0xffff0000")
    e("    s_mov_b32 s12, s6")
    e("    s_and_b32 s13, s7, 0xffff")
    e(f"    s_mov_b32 s14, {100000*256}")
    e("    s_mov_b32 s15, 0x00020000")
    e("    s_and_b32 s29, s29, 0xffff")
    e(f"    s_mov_b32 s30, {B*8}")
    e("    s_mov_b32 s31, 0x00020000")
    e("    s_mov_b32 s16, s36")
    e("    s_and_b32 s17, s37, 0xffff")
    e(f"    s_mov_b32 s18, {B*2}")
    e("    s_mov_b32 s19, 0x00020000")
    e("    s_mov_b32 s24, s38")
    e("    s_and_b32 s25, s39, 0xffff")
    e("    s_mov_b32 s26, 256")
    e("    s_mov_b32 s27, 0x00020000")
    e("    v_lshrrev_b32 v7, 3, v2              ; m>>3")
    e("    v_cmp_eq_u32 vcc, v7, v3")
    e("    v_and_b32 v4, 1, v2")
    e("    v_lshlrev_b32 v4, 4, v4")
    e("    v_mov_b32 v7, 0x3f80")
    e("    v_lshlrev_b32 v7, v4, v7")
    e("    v_cndmask_b32 v7, 0, v7, vcc")
    e("    v_bfe_u32 v4, v2, 1, 2")
    for r in range(4):
        e(f"    v_cmp_eq_u32 vcc, {r}, v4")
        e("    s_nop 1")
        e(f"    v_cndmask_b32 v{ASEL+r}, 0, v7, vcc")
    e(f"    s_mul_i32 s3, s22, {WPB*TPW*SPT}")
    e("    v_lshl_add_u32 v5, v5, 3, s3")
    e("    v_and_b32 v4, 3, v2")
    e("    v_lshl_add_u32 v5, v4, 1, v5         ; + 2n  ((n>>1)*4+(n&1)*2 == 2n)")
    e("    v_add_u32 v1, v5, v3")
    e(f"    v_lshrrev_b32 v{VF}, 8, v1")
    e(f"    v_lshlrev_b32 v{VF}, 2, v{VF}")
    e(f"    v_and_b32 v{LO}, {LP-1}, v2")
    e(f"    v_lshlrev_b32 v{LO}, 4, v{LO}")
    e("    s_lshl_b32 s3, s23, 7")
    e(f"    v_add_u32 v{LO}, s3, v{LO}             ; laneoff")
    e("    s_cmp_lg_u32 s23, 0")
    e("    s_cselect_b64 s[32:33], -1, 0")
    for k in range(nld):
        e(f"    s_waitcnt vmcnt({nld-1-k})")
        e(f"    ds_write_b64 v{W}, v[{D0+2*k}:{D0+2*k+1}] offset:{512*k}")
    e("; @M1")
    lists = []
    for k in range(TPW):
        o = k * SPT * 26
        base = IDX + 14 * k
        for q in range(6):
            e(f"    ds_read2_b32 v[{base+2*q}:{base+2*q+1}], v{R} offset0:{o+2*q} offset1:{o+2*q+1}")
        e(f"    ds_read_b32 v{base+12}, v{R} offset:{(o+12)*4}")
        lists.append(list(range(base, base + 13)))
    spares = [IDX + 13, IDX + 27]
    items = [(0, 0), (0, 1), (1, 0), (1, 1)] + [(k, t) for t in range(2, 13) for k in range(TPW)]
    phys = [None, None]
    issued = []
    def issue(n, reg=None):
        k, t = items[n]
        d = D0 + 4 * (n % DEPTH)
        r = reg if reg is not None else phys[k][t]
        e(f"    v_lshl_add_u32 v{d}, v{r}, 8, v{LO}")
        e(f"    buffer_load_dwordx4 v[{d}:{d+3}], v{d}, s[12:15], 0 offen")
        issued.append(n)
    for k in range(TPW):
        e(f"    s_waitcnt lgkmcnt({7*(TPW-1-k)})")
        p = list(lists[k])
        lasttouch = {}
        for i, op in enumerate(net):
            for x in op: lasttouch[x] = i
        nexto = 0
        for i, op in enumerate(net):
            a, b, c = op
            t1, t2 = spares
            e(f"    v_med3_u32 v{t1}, v{p[a]}, v{p[b]}, v{p[c]}")
            e(f"    v_max3_u32 v{t2}, v{p[a]}, v{p[b]}, v{p[c]}")
            e(f"    v_min3_u32 v{p[a]}, v{p[a]}, v{p[b]}, v{p[c]}")
            spares = [p[b], p[c]]
            p[b], p[c] = t1, t2
            while early and nexto < 2 and lasttouch.get(order[nexto], -1) <= i:
                if k == 0 and nexto == 0:
                    e("; @MID")
                issue(2 * k + nexto, p[order[nexto]])
                nexto += 1
        phys[k] = [p[x] for x in order]
        while nexto < 2 and early:
            issue(2 * k + nexto); nexto += 1
    if not early:
        e("; @MID")
    for n in range(DEPTH):
        if n not in issued:
            issue(n)
    if touch:
        e(f"    s_mul_i32 s35, s22, {WPB}")
        e("    s_add_u32 s35, s35, s34")
        e("    s_lshl_b32 s34, s35, 4")
        e("    s_load_dword s44, s[36:37], s34")
        e("    s_load_dword s45, s[28:29], 0x20000")
    assert issued == list(range(DEPTH)), issued
    outstanding = [("L", n) for n in range(DEPTH)]
    pend = None
    pend_reissue = None
    BS = None
    for n in range(NL):
        k, t = items[n]
        a = ACC + 8 * k
        S, Q = a, a + 4
        d = D0 + 4 * (n % DEPTH)
        pos = outstanding.index(("L", n))
        if BAREV and n > 0 and n % BAREV == 0 and n + DEPTH <= NL:
            e("    s_barrier")
        e(f"    s_waitcnt vmcnt({len(outstanding)-pos-1})")
        outstanding = outstanding[pos+1:]
        c = "0" if t == 0 else f"v[{S}:{S+3}]"
        e(f"    v_mfma_f32_16x16x32_bf16 v[{S}:{S+3}], v[{ASEL}:{ASEL+3}], v[{d}:{d+3}], {c}")
        if pend is not None:
            e(pend); pend = None
            if pend_reissue is not None:
                issue(pend_reissue); outstanding.append(("L", pend_reissue)); pend_reissue = None
        if n == NL - flagat:
            e(f"    buffer_load_dword v{VF}, v{VF}, s[24:27], 0 offen sc1")
            outstanding.append(("F", 0))
        for kk in (0, 2):
            e(f"    v_lshlrev_b32 v{T}, 16, v{d+kk}")
            e(f"    v_and_b32 v{T+1}, s20, v{d+kk}")
            e(f"    v_lshlrev_b32 v{T+2}, 16, v{d+kk+1}")
            e(f"    v_and_b32 v{T+3}, s20, v{d+kk+1}")
            e(f"    v_pk_mul_f32 v[{T}:{T+1}], v[{T}:{T+1}], v[{T}:{T+1}]")
            e(f"    v_pk_mul_f32 v[{T+2}:{T+3}], v[{T+2}:{T+3}], v[{T+2}:{T+3}]")
            e(f"    v_cvt_pk_bf16_f32 v{d+kk}, v{T}, v{T+1}")
            e(f"    v_cvt_pk_bf16_f32 v{d+kk+1}, v{T+2}, v{T+3}")
        c = "0" if t == 0 else f"v[{Q}:{Q+3}]"
        pend = f"    v_mfma_f32_16x16x32_bf16 v[{Q}:{Q+3}], v[{ASEL}:{ASEL+3}], v[{d}:{d+3}], {c}"
        if n + DEPTH < NL:
            pend_reissue = n + DEPTH
        if n == NL - 3:
            assert len(issued) == NL
            BS = IDX
            AD = IDX + 4
            SL = IDX + 8
            e(f"    v_and_b32 v{SL}, 15, v0               ; n")
            e(f"    v_bfe_u32 v{SL+1}, v0, 5, 1           ; q>>1")
            e(f"    v_mov_b32 v{SL+2}, 0x3f803f80")
            e(f"    v_cmp_eq_u32 vcc, v{SL}, v{SL+1}")
            e(f"    v_add_u32 v{SL+1}, 2, v{SL+1}")
            e("    s_nop 0")
            e(f"    v_cndmask_b32 v{BS}, 0, v{SL+2}, vcc")
            e(f"    v_cndmask_b32 v{BS+1}, 0, v{SL+2}, vcc")
            e(f"    v_cmp_eq_u32 vcc, v{SL}, v{SL+1}       ; n == 2+(q>>1) (task 1)")
            e(f"    v_lshlrev_b32 v{SL}, 3, v1")
            e("    v_lshlrev_b32 v1, 1, v1")
            e(f"    v_cndmask_b32 v{BS+2}, 0, v{SL+2}, vcc")
            e(f"    v_cndmask_b32 v{BS+3}, 0, v{SL+2}, vcc")
    e("    s_nop 1")
    e(pend)
    e("; @M2")
    def unpack(dst, src):
        e(f"    v_lshlrev_b32 v{dst}, 16, v{src}")
        e(f"    v_and_b32 v{dst+1}, s20, v{src}")
    for k in range(TPW):
        S, Q = ACC + 8 * k, ACC + 8 * k + 4
        e(f"    v_cvt_pk_bf16_f32 v{T}, v{S}, v{S+1}")
        e(f"    v_cvt_pk_bf16_f32 v{T+1}, v{S+2}, v{S+3}")
        unpack(S, T); unpack(S + 2, T + 1)
        e(f"    v_pk_mul_f32 v[{S}:{S+1}], v[{S}:{S+1}], v[{S}:{S+1}]")
        e(f"    v_pk_mul_f32 v[{S+2}:{S+3}], v[{S+2}:{S+3}], v[{S+2}:{S+3}]")
        e(f"    v_cvt_pk_bf16_f32 v{T}, v{S}, v{S+1}")
        e(f"    v_cvt_pk_bf16_f32 v{T+1}, v{S+2}, v{S+3}")
        e(f"    v_cvt_pk_bf16_f32 v{T+2}, v{Q}, v{Q+1}")
        e(f"    v_cvt_pk_bf16_f32 v{T+3}, v{Q+2}, v{Q+3}")
        unpack(S, T); unpack(S + 2, T + 1)
        unpack(Q, T + 2); unpack(Q + 2, T + 3)
        e(f"    v_pk_add_f32 v[{S}:{S+1}], v[{S}:{S+1}], v[{Q}:{Q+1}] neg_lo:[0,1] neg_hi:[0,1]")
        e(f"    v_pk_add_f32 v[{S+2}:{S+3}], v[{S+2}:{S+3}], v[{Q+2}:{Q+3}] neg_lo:[0,1] neg_hi:[0,1]")
        e(f"    v_cvt_pk_bf16_f32 v{AD+2*k}, v{S}, v{S+1}")
        e(f"    v_cvt_pk_bf16_f32 v{AD+2*k+1}, v{S+2}, v{S+3}")
    M = ACC
    e("    s_waitcnt vmcnt(0)")
    e(f"    v_cmp_eq_u32 vcc, 0, v{VF}")
    e(f"    v_mfma_f32_16x16x32_bf16 v[{M}:{M+3}], v[{AD}:{AD+3}], v[{BS}:{BS+3}], 0")
    e("    s_cmp_lg_u64 vcc, 0")
    e("    s_cbranch_scc1 L_slow")
    e("L_go:")
    e("    v_mov_b32 v4, 0x7fc00000")
    e("    s_nop 4")
    e(f"    v_pk_add_f32 v[{M}:{M+1}], v[{M}:{M+1}], v[{M+2}:{M+3}]")
    e(f"    v_add_f32 v{M}, v{M}, v{M+1}")
    e(f"    v_mov_b32 v{M+1}, v{M}")
    e("    s_nop 1")
    e(f"    v_permlane16_swap_b32 v{M}, v{M+1}")
    e(f"    v_add_f32 v{M}, v{M}, v{M+1}")
    e(f"    v_cmp_u_f32 vcc, v{M}, v{M}")
    e("    s_mov_b32 exec_lo, 0x0000000f")
    e("    s_mov_b32 exec_hi, 0x0000000f")
    e(f"    v_cndmask_b32 v{M}, v{M}, v4, vcc")
    e(f"    v_cndmask_b32 v2, v{M}, -1, s[32:33]")
    e(f"    v_cndmask_b32 v3, -1, v{M}, s[32:33]")
    e("; @M3")
    e(f"    buffer_atomic_and_x2 v[2:3], v{SL}, s[28:31], 0 offen sc0 sc1")
    e("    s_waitcnt vmcnt(0)")
    e("    v_cndmask_b32 v2, v3, v2, s[32:33]")
    e("    v_cmp_ne_u32 vcc, -1, v2")
    e(f"    v_add_f32 v2, v2, v{M}")
    e("    v_mul_f32 v2, 0.5, v2")
    e("    v_cvt_pk_bf16_f32 v2, v2, v2")
    e("    s_and_b64 exec, exec, vcc")
    e("    s_cbranch_execz L_fin")
    e("    buffer_store_short v2, v1, s[16:19], 0 offen")
    e("L_fin:")
    e("L_end:")
    e("    s_endpgm")
    e("L_slow:")
    e("    v_lshrrev_b32 v5, 9, v1               ; v1 = sample*2")
    e("    v_lshlrev_b32 v5, 2, v5")
    e("L_poll:")
    e("    s_sleep 32")
    e(f"    v_mov_b32 v{VF}, 0")
    e("    s_mov_b64 exec, 1")
    e(f"    buffer_atomic_or v{VF}, v5, s[24:27], 0 offen sc0 sc1")
    e("    s_waitcnt vmcnt(0)")
    e(f"    v_cmp_eq_u32 vcc, 0, v{VF}")
    e("    s_mov_b64 exec, -1")
    e("    s_cmp_lg_u64 vcc, 0")
    e("    s_cbranch_scc1 L_poll")
    e("    s_branch L_go")
    e("L_helper:")
    e("    s_load_dwordx2 s[24:25], s[0:1], 24     ; dbg")
    e("    s_load_dwordx2 s[28:29], s[0:1], 32     ; ws")
    e("    v_lshrrev_b32 v5, 6, v0")
    e("    v_and_b32 v1, 63, v0")
    e("    v_readfirstlane_b32 s34, v5")
    for r in range(4):
        e(f"    v_mov_b32 v{8+r}, -1")
    e("    s_cmp_ge_u32 s34, 8")
    e("    s_cbranch_scc1 L_end")
    e("    s_lshl_b32 s3, s2, 3")
    e("    s_add_u32 s3, s3, s34")
    e(f"    s_mul_i32 s35, s3, {ZB}")
    e("    v_lshlrev_b32 v2, 4, v1")
    e("    v_add_u32 v2, s35, v2")
    e("    s_lshl_b32 s3, s3, 2")
    e("    v_mov_b32 v3, s3")
    e("    v_mov_b32 v4, 1")
    e(f"    s_mov_b32 s30, {B*8}")
    e("    s_mov_b32 s31, 0x00020000")
    e("    s_mov_b32 s26, 256")
    e("    s_mov_b32 s27, 0x00020000")
    e("    s_waitcnt lgkmcnt(0)")
    e("    s_and_b32 s29, s29, 0xffff")
    e("    s_and_b32 s25, s25, 0xffff")
    for k in range(ZB // 1024):
        e(f"    buffer_store_dwordx4 v[8:11], v2, s[28:31], 0 offen offset:{1024*k} sc1")
    e("    s_mov_b64 exec, 1")
    e("    s_waitcnt vmcnt(0)")
    e("    buffer_store_dword v4, v3, s[24:27], 0 offen sc1")
    e("    s_endpgm")
    kd(e, NAME, NV, 48)
    return "\n".join(L) + "\n"

if __name__ == "__main__":
    ap = argparse.ArgumentParser()
    ap.add_argument("-o", required=True)
    ap.add_argument("--depth", type=int, default=4)
    ap.add_argument("--wpb", type=int, default=8)
    ap.add_argument("--net", type=int, default=36)
    ap.add_argument("--barev", type=int, default=4)
    ap.add_argument("--xmap", default="div")
    ap.add_argument("--flagat", type=int, default=3)
    ap.add_argument("--noearly", action="store_true")
    ap.add_argument("--touch", action="store_true")
    a = ap.parse_args()
    open(a.o, "w").write(gen(a.depth, a.wpb, a.net, a.barev, a.xmap, a.flagat, not a.noearly, a.touch))
```

```python
import sys, argparse
from gen1 import HEADER, NAME
from gen2 import kd

B = 16384
NETS = {
 24: ([(0, 11, 10), (7, 9, 2), (5, 6, 4), (1, 3, 8), (9, 12, 11), (6, 12, 3), (2, 10, 4), (0, 5, 1)],
      [0, 5, 7, 9, 6, 1, 12, 2, 3, 11, 8, 10, 4]),
 30: ([(0, 11, 10), (7, 9, 2), (5, 6, 4), (1, 3, 8), (9, 12, 11), (6, 12, 3), (2, 10, 4), (0, 5, 1), (2, 11, 8), (7, 9, 1)],
      [0, 7, 5, 9, 6, 1, 12, 2, 3, 11, 10, 8, 4]),
 36: ([(0, 11, 10), (7, 9, 2), (5, 6, 4), (1, 3, 8), (9, 12, 11), (6, 12, 3), (2, 10, 4), (0, 5, 1), (2, 11, 8), (7, 9, 1), (1, 12, 2), (5, 9, 6)],
      [0, 7, 5, 9, 6, 1, 12, 2, 3, 11, 10, 8, 4]),
 42: ([(0, 11, 10), (7, 9, 2), (5, 6, 4), (1, 3, 8), (9, 12, 11), (6, 12, 3), (2, 10, 4), (0, 5, 1), (2, 11, 8), (7, 9, 1), (1, 12, 2), (5, 9, 6), (3, 11, 10), (0, 7, 5)],
      [0, 7, 5, 9, 6, 1, 12, 2, 3, 11, 10, 8, 4]),
}

def schedule(net, order):
    n = len(net)
    deps = [set() for _ in range(n)]
    last = {}
    for i, op in enumerate(net):
        for p in op:
            if p in last: deps[i].add(last[p])
            last[p] = i
    rank = {p: r for r, p in enumerate(order)}
    prio = [99] * n
    for p, i in last.items():
        prio[i] = min(prio[i], rank[p])
    for i in reversed(range(n)):
        for d in deps[i]:
            prio[d] = min(prio[d], prio[i])
    done = []; res = []
    while len(res) < n:
        c = [i for i in range(n) if i not in done and deps[i] <= set(done)]
        i = min(c, key=lambda i: (prio[i], i))
        done.append(i); res.append(net[i])
    return res

def gen(DEPTH=4, WPB=8, netc=36, BAREV=4, xmap="div", flagat=3, early=True, touch=False, ttouch=0):
    NS = 2; LP = 8; SPT = 4; TPW = 2; NZ = 64; NH = 8
    ntasks = B // SPT * NS
    nblk = ntasks // (WPB * TPW)
    NL = 13 * TPW
    WB = TPW * SPT * 104
    nld = 2
    LDSW = 1024
    ZB = B * 8 // NZ
    assert WPB >= 8 and DEPTH >= 4
    net, order = NETS[netc]
    net = schedule(net, order)
    L = []
    e = L.append
    e(HEADER.rstrip())
    e(f"; @launch grid=({nblk+NH},1,1) block=({64*WPB},1,1) lds={LDSW*WPB}")
    e('.amdgcn_target "amdgcn-amd-amdhsa--gfx950"')
    e(".text")
    e(f".globl {NAME}")
    e(".p2align 8")
    e(f".type {NAME},@function")
    e(f"{NAME}:")
    T = 2
    LO = 7
    ASEL = 8
    ACC = 12
    IDX = 28
    SP = [IDX + 26, IDX + 27]
    VF = 6
    D0 = 56
    NV = D0 + 4 * DEPTH
    e(f"    s_cmp_ge_u32 s2, {nblk+NH}")
    e("    s_cbranch_scc1 L_end")
    e(f"    s_cmp_lt_u32 s2, {NH}")
    e("    s_cbranch_scc1 L_helper")
    e("    s_load_dwordx4 s[4:7], s[0:1], 0")
    e("    s_load_dwordx4 s[36:39], s[0:1], 16")
    e("    s_load_dwordx2 s[28:29], s[0:1], 32     ; ws")
    e("    s_and_b32 s21, s2, 7                 ; x")
    e("    s_lshr_b32 s22, s2, 3")
    e("    s_sub_u32 s22, s22, 1                ; round")
    if xmap == "mod":
        e("    s_and_b32 s23, s21, 1              ; slice c")
        e("    s_lshr_b32 s21, s21, 1             ; u")
    else:
        e("    s_lshr_b32 s23, s21, 2             ; slice c")
        e("    s_and_b32 s21, s21, 3              ; u")
    e("    s_lshl_b32 s22, s22, 2")
    e("    s_add_u32 s22, s22, s21")
    e("    v_and_b32 v1, 63, v0                 ; lane")
    e("    v_lshrrev_b32 v5, 6, v0")
    e(f"    s_mul_i32 s3, s22, {WPB*WB}")
    e(f"    v_mul_u32_u24 v6, {WB}, v5")
    if touch:
        e("    v_readfirstlane_b32 s34, v5")
    e("    v_lshl_add_u32 v6, v1, 3, v6")
    e("    v_add_u32 v6, s3, v6")
    e(f"    s_mov_b32 s10, {B*104}")
    e("    s_mov_b32 s11, 0x00020000")
    R = D0 + 4
    W = D0 + 5
    e("    v_and_b32 v2, 15, v0                 ; j")
    e("    v_lshrrev_b32 v3, 5, v1              ; h")
    e("    v_bfe_u32 v4, v1, 4, 1               ; parity")
    e("    v_lshrrev_b32 v7, 3, v2              ; sub")
    e("    v_lshl_add_u32 v7, v3, 1, v7")
    e(f"    v_lshlrev_b32 v{W}, 10, v5")
    e(f"    v_mul_u32_u24 v{R}, 104, v7")
    e("    v_mul_u32_u24 v4, 52, v4")
    e(f"    v_add3_u32 v{R}, v{R}, v4, v{W}")
    e(f"    v_lshl_add_u32 v{W}, v1, 3, v{W}")
    e("    s_waitcnt lgkmcnt(0)")
    e("; @M0")
    e("    s_mov_b32 s8, s4")
    e("    s_and_b32 s9, s5, 0xffff")
    for k in range(nld):
        e(f"    buffer_load_dwordx2 v[{D0+2*k}:{D0+2*k+1}], v6, s[8:11], 0 offen offset:{512*k}")
    e("    s_mov_b32 s20, 0xffff0000")
    e("    s_mov_b32 s12, s6")
    e("    s_and_b32 s13, s7, 0xffff")
    e(f"    s_mov_b32 s14, {100000*256}")
    e("    s_mov_b32 s15, 0x00020000")
    e("    s_and_b32 s29, s29, 0xffff")
    e(f"    s_mov_b32 s30, {B*8}")
    e("    s_mov_b32 s31, 0x00020000")
    e("    s_mov_b32 s16, s36")
    e("    s_and_b32 s17, s37, 0xffff")
    e(f"    s_mov_b32 s18, {B*2}")
    e("    s_mov_b32 s19, 0x00020000")
    e("    s_mov_b32 s24, s38")
    e("    s_and_b32 s25, s39, 0xffff")
    e("    s_mov_b32 s26, 256")
    e("    s_mov_b32 s27, 0x00020000")
    e("    v_lshrrev_b32 v7, 3, v2              ; m>>3")
    e("    v_cmp_eq_u32 vcc, v7, v3")
    e("    v_and_b32 v4, 1, v2")
    e("    v_lshlrev_b32 v4, 4, v4")
    e("    v_mov_b32 v7, 0x3f80")
    e("    v_lshlrev_b32 v7, v4, v7")
    e("    v_cndmask_b32 v7, 0, v7, vcc")
    e("    v_bfe_u32 v4, v2, 1, 2")
    for r in range(4):
        e(f"    v_cmp_eq_u32 vcc, {r}, v4")
        e("    s_nop 1")
        e(f"    v_cndmask_b32 v{ASEL+r}, 0, v7, vcc")
    e(f"    s_mul_i32 s3, s22, {WPB*TPW*SPT}")
    e("    v_lshl_add_u32 v5, v5, 3, s3")
    e("    v_and_b32 v4, 3, v2")
    e("    v_lshl_add_u32 v5, v4, 1, v5         ; + 2n  ((n>>1)*4+(n&1)*2 == 2n)")
    e("    v_add_u32 v1, v5, v3")
    e(f"    v_lshrrev_b32 v{VF}, 8, v1")
    e(f"    v_lshlrev_b32 v{VF}, 2, v{VF}")
    e(f"    v_and_b32 v{LO}, {LP-1}, v2")
    e(f"    v_lshlrev_b32 v{LO}, 4, v{LO}")
    e("    s_lshl_b32 s3, s23, 7")
    e(f"    v_add_u32 v{LO}, s3, v{LO}             ; laneoff")
    e("    s_cmp_lg_u32 s23, 0")
    e("    s_cselect_b64 s[32:33], -1, 0")
    for k in range(nld):
        e(f"    s_waitcnt vmcnt({nld-1-k})")
        e(f"    ds_write_b64 v{W}, v[{D0+2*k}:{D0+2*k+1}] offset:{512*k}")
    e("; @M1")
    lists = []
    for k in range(TPW):
        o = k * SPT * 26
        base = IDX + 14 * k
        for q in range(6):
            e(f"    ds_read2_b32 v[{base+2*q}:{base+2*q+1}], v{R} offset0:{o+2*q} offset1:{o+2*q+1}")
        e(f"    ds_read_b32 v{base+12}, v{R} offset:{(o+12)*4}")
        lists.append(list(range(base, base + 13)))
    spares = [IDX + 13, IDX + 27]
    items = [(0, 0), (0, 1), (1, 0), (1, 1)] + [(k, t) for t in range(2, 13) for k in range(TPW)]
    phys = [None, None]
    issued = []
    def issue(n, reg=None):
        k, t = items[n]
        d = D0 + 4 * (n % DEPTH)
        r = reg if reg is not None else phys[k][t]
        e(f"    v_lshl_add_u32 v{d}, v{r}, 8, v{LO}")
        e(f"    buffer_load_dwordx4 v[{d}:{d+3}], v{d}, s[12:15], 0 offen")
        issued.append(n)
    for k in range(TPW):
        e(f"    s_waitcnt lgkmcnt({7*(TPW-1-k)})")
        p = list(lists[k])
        lasttouch = {}
        for i, op in enumerate(net):
            for x in op: lasttouch[x] = i
        nexto = 0
        for i, op in enumerate(net):
            a, b, c = op
            t1, t2 = spares
            e(f"    v_med3_u32 v{t1}, v{p[a]}, v{p[b]}, v{p[c]}")
            e(f"    v_max3_u32 v{t2}, v{p[a]}, v{p[b]}, v{p[c]}")
            e(f"    v_min3_u32 v{p[a]}, v{p[a]}, v{p[b]}, v{p[c]}")
            spares = [p[b], p[c]]
            p[b], p[c] = t1, t2
            while early and nexto < 2 and lasttouch.get(order[nexto], -1) <= i:
                if k == 0 and nexto == 0:
                    e("; @MID")
                issue(2 * k + nexto, p[order[nexto]])
                nexto += 1
        phys[k] = [p[x] for x in order]
        while nexto < 2 and early:
            issue(2 * k + nexto); nexto += 1
    if not early:
        e("; @MID")
    for n in range(DEPTH):
        if n not in issued:
            issue(n)
    if touch:
        e(f"    s_mul_i32 s35, s22, {WPB}")
        e("    s_add_u32 s35, s35, s34")
        e("    s_lshl_b32 s34, s35, 4")
        e("    s_load_dword s44, s[36:37], s34")
        e("    s_load_dword s45, s[28:29], 0x20000")
    assert issued == list(range(DEPTH)), issued
    outstanding = [("L", n) for n in range(DEPTH)]
    pend = None
    pend_reissue = None
    BS = None
    for n in range(NL):
        k, t = items[n]
        a = ACC + 8 * k
        S, Q = a, a + 4
        d = D0 + 4 * (n % DEPTH)
        pos = outstanding.index(("L", n))
        if BAREV and n > 0 and n % BAREV == 0 and n + DEPTH <= NL:
            e("    s_barrier")
        e(f"    s_waitcnt vmcnt({len(outstanding)-pos-1})")
        outstanding = outstanding[pos+1:]
        c = "0" if t == 0 else f"v[{S}:{S+3}]"
        e(f"    v_mfma_f32_16x16x32_bf16 v[{S}:{S+3}], v[{ASEL}:{ASEL+3}], v[{d}:{d+3}], {c}")
        if pend is not None:
            e(pend); pend = None
            if pend_reissue is not None:
                issue(pend_reissue); outstanding.append(("L", pend_reissue)); pend_reissue = None
        if n == NL - flagat:
            e(f"    buffer_load_dword v{VF}, v{VF}, s[24:27], 0 offen sc1")
            outstanding.append(("F", 0))
        for kk in (0, 2):
            e(f"    v_lshlrev_b32 v{T}, 16, v{d+kk}")
            e(f"    v_and_b32 v{T+1}, s20, v{d+kk}")
            e(f"    v_lshlrev_b32 v{T+2}, 16, v{d+kk+1}")
            e(f"    v_and_b32 v{T+3}, s20, v{d+kk+1}")
            e(f"    v_pk_mul_f32 v[{T}:{T+1}], v[{T}:{T+1}], v[{T}:{T+1}]")
            e(f"    v_pk_mul_f32 v[{T+2}:{T+3}], v[{T+2}:{T+3}], v[{T+2}:{T+3}]")
            e(f"    v_cvt_pk_bf16_f32 v{d+kk}, v{T}, v{T+1}")
            e(f"    v_cvt_pk_bf16_f32 v{d+kk+1}, v{T+2}, v{T+3}")
        c = "0" if t == 0 else f"v[{Q}:{Q+3}]"
        pend = f"    v_mfma_f32_16x16x32_bf16 v[{Q}:{Q+3}], v[{ASEL}:{ASEL+3}], v[{d}:{d+3}], {c}"
        if n + DEPTH < NL:
            pend_reissue = n + DEPTH
        if n == NL - 3:
            assert len(issued) == NL
            BS = IDX
            AD = IDX + 4
            SL = IDX + 8
            e(f"    v_and_b32 v{SL}, 15, v0               ; n")
            e(f"    v_bfe_u32 v{SL+1}, v0, 5, 1           ; q>>1")
            e(f"    v_mov_b32 v{SL+2}, 0x3f803f80")
            e(f"    v_cmp_eq_u32 vcc, v{SL}, v{SL+1}")
            e(f"    v_add_u32 v{SL+1}, 2, v{SL+1}")
            e("    s_nop 0")
            e(f"    v_cndmask_b32 v{BS}, 0, v{SL+2}, vcc")
            e(f"    v_cndmask_b32 v{BS+1}, 0, v{SL+2}, vcc")
            e(f"    v_cmp_eq_u32 vcc, v{SL}, v{SL+1}       ; n == 2+(q>>1) (task 1)")
            e(f"    v_lshlrev_b32 v{SL}, 3, v1")
            e("    v_lshlrev_b32 v1, 1, v1")
            e(f"    v_cndmask_b32 v{BS+2}, 0, v{SL+2}, vcc")
            e(f"    v_cndmask_b32 v{BS+3}, 0, v{SL+2}, vcc")
    e("    s_nop 1")
    e(pend)
    e("; @M2")
    def unpack(dst, src):
        e(f"    v_lshlrev_b32 v{dst}, 16, v{src}")
        e(f"    v_and_b32 v{dst+1}, s20, v{src}")
    for k in range(TPW):
        S, Q = ACC + 8 * k, ACC + 8 * k + 4
        e(f"    v_cvt_pk_bf16_f32 v{T}, v{S}, v{S+1}")
        e(f"    v_cvt_pk_bf16_f32 v{T+1}, v{S+2}, v{S+3}")
        unpack(S, T); unpack(S + 2, T + 1)
        e(f"    v_pk_mul_f32 v[{S}:{S+1}], v[{S}:{S+1}], v[{S}:{S+1}]")
        e(f"    v_pk_mul_f32 v[{S+2}:{S+3}], v[{S+2}:{S+3}], v[{S+2}:{S+3}]")
        e(f"    v_cvt_pk_bf16_f32 v{T}, v{S}, v{S+1}")
        e(f"    v_cvt_pk_bf16_f32 v{T+1}, v{S+2}, v{S+3}")
        e(f"    v_cvt_pk_bf16_f32 v{T+2}, v{Q}, v{Q+1}")
        e(f"    v_cvt_pk_bf16_f32 v{T+3}, v{Q+2}, v{Q+3}")
        unpack(S, T); unpack(S + 2, T + 1)
        unpack(Q, T + 2); unpack(Q + 2, T + 3)
        e(f"    v_pk_add_f32 v[{S}:{S+1}], v[{S}:{S+1}], v[{Q}:{Q+1}] neg_lo:[0,1] neg_hi:[0,1]")
        e(f"    v_pk_add_f32 v[{S+2}:{S+3}], v[{S+2}:{S+3}], v[{Q+2}:{Q+3}] neg_lo:[0,1] neg_hi:[0,1]")
        e(f"    v_cvt_pk_bf16_f32 v{AD+2*k}, v{S}, v{S+1}")
        e(f"    v_cvt_pk_bf16_f32 v{AD+2*k+1}, v{S+2}, v{S+3}")
    M = ACC
    e("    s_waitcnt vmcnt(0)")
    e(f"    v_cmp_eq_u32 vcc, 0, v{VF}")
    e(f"    v_mfma_f32_16x16x32_bf16 v[{M}:{M+3}], v[{AD}:{AD+3}], v[{BS}:{BS+3}], 0")
    e("    s_cmp_lg_u64 vcc, 0")
    e("    s_cbranch_scc1 L_slow")
    e("L_go:")
    e("    v_mov_b32 v4, 0x7fc00000")
    e("    s_nop 4")
    e(f"    v_pk_add_f32 v[{M}:{M+1}], v[{M}:{M+1}], v[{M+2}:{M+3}]")
    e(f"    v_add_f32 v{M}, v{M}, v{M+1}")
    e(f"    v_mov_b32 v{M+1}, v{M}")
    e("    s_nop 1")
    e(f"    v_permlane16_swap_b32 v{M}, v{M+1}")
    e(f"    v_add_f32 v{M}, v{M}, v{M+1}")
    e(f"    v_cmp_u_f32 vcc, v{M}, v{M}")
    e("    s_mov_b32 exec_lo, 0x0000000f")
    e("    s_mov_b32 exec_hi, 0x0000000f")
    e(f"    v_cndmask_b32 v{M}, v{M}, v4, vcc")
    e(f"    v_cndmask_b32 v2, v{M}, -1, s[32:33]")
    e(f"    v_cndmask_b32 v3, -1, v{M}, s[32:33]")
    e("; @M3")
    e(f"    buffer_atomic_and_x2 v[2:3], v{SL}, s[28:31], 0 offen sc0 sc1")
    e("    s_waitcnt vmcnt(0)")
    e("    v_cndmask_b32 v2, v3, v2, s[32:33]")
    e("    v_cmp_ne_u32 vcc, -1, v2")
    e(f"    v_add_f32 v2, v2, v{M}")
    e("    v_mul_f32 v2, 0.5, v2")
    e("    v_cvt_pk_bf16_f32 v2, v2, v2")
    e("    s_and_b64 exec, exec, vcc")
    e("    s_cbranch_execz L_fin")
    e("    buffer_store_short v2, v1, s[16:19], 0 offen")
    e("L_fin:")
    e("L_end:")
    e("    s_endpgm")
    e("L_slow:")
    e("    v_lshrrev_b32 v5, 9, v1               ; v1 = sample*2")
    e("    v_lshlrev_b32 v5, 2, v5")
    e("L_poll:")
    e("    s_sleep 32")
    e(f"    v_mov_b32 v{VF}, 0")
    e("    s_mov_b64 exec, 1")
    e(f"    buffer_atomic_or v{VF}, v5, s[24:27], 0 offen sc0 sc1")
    e("    s_waitcnt vmcnt(0)")
    e(f"    v_cmp_eq_u32 vcc, 0, v{VF}")
    e("    s_mov_b64 exec, -1")
    e("    s_cmp_lg_u64 vcc, 0")
    e("    s_cbranch_scc1 L_poll")
    e("    s_branch L_go")
    e("L_helper:")
    e("    s_load_dwordx2 s[24:25], s[0:1], 24     ; dbg")
    e("    s_load_dwordx2 s[28:29], s[0:1], 32     ; ws")
    if ttouch:
        e("    s_load_dwordx2 s[12:13], s[0:1], 8      ; table")
    e("    v_lshrrev_b32 v5, 6, v0")
    e("    v_and_b32 v1, 63, v0")
    e("    v_readfirstlane_b32 s34, v5")
    for r in range(4):
        e(f"    v_mov_b32 v{8+r}, -1")
    e("    s_cmp_ge_u32 s34, 8")
    e("    s_cbranch_scc1 L_end")
    e("    s_lshl_b32 s3, s2, 3")
    e("    s_add_u32 s3, s3, s34")
    e(f"    s_mul_i32 s35, s3, {ZB}")
    e("    v_lshlrev_b32 v2, 4, v1")
    e("    v_add_u32 v2, s35, v2")
    e("    s_lshl_b32 s3, s3, 2")
    e("    v_mov_b32 v3, s3")
    e("    v_mov_b32 v4, 1")
    e(f"    s_mov_b32 s30, {B*8}")
    e("    s_mov_b32 s31, 0x00020000")
    e("    s_mov_b32 s26, 256")
    e("    s_mov_b32 s27, 0x00020000")
    e("    s_waitcnt lgkmcnt(0)")
    e("    s_and_b32 s29, s29, 0xffff")
    e("    s_and_b32 s25, s25, 0xffff")
    if ttouch:
        TB = 100000 * 256
        ntouch = (TB + ttouch - 1) // ttouch
        per = (ntouch + 511) // 512
        e("    s_and_b32 s13, s13, 0xffff")
        e(f"    s_mov_b32 s14, {TB}")
        e("    s_mov_b32 s15, 0x00020000")
        e("    v_and_b32 v6, 0x1ff, v0")
        e(f"    s_mov_b32 s3, {ttouch}")
        e("    v_mul_lo_u32 v6, v6, s3")
        if xmap == "mod":
            e("    s_and_b32 s3, s2, 1")
        else:
            e("    s_lshr_b32 s3, s2, 2")
        e("    s_lshl_b32 s3, s3, 7")
        e("    v_add_u32 v6, s3, v6")
        for k in range(per):
            e(f"    s_mov_b32 s3, {k*512*ttouch}")
            e(f"    buffer_load_dword v{12+k}, v6, s[12:15], s3 offen")
    for k in range(ZB // 1024):
        e(f"    buffer_store_dwordx4 v[8:11], v2, s[28:31], 0 offen offset:{1024*k} sc1")
    e("    s_mov_b64 exec, 1")
    e("    s_waitcnt vmcnt(0)")
    e("    buffer_store_dword v4, v3, s[24:27], 0 offen sc1")
    e("    s_endpgm")
    kd(e, NAME, NV, 48)
    return "\n".join(L) + "\n"

if __name__ == "__main__":
    ap = argparse.ArgumentParser()
    ap.add_argument("-o", required=True)
    ap.add_argument("--depth", type=int, default=4)
    ap.add_argument("--wpb", type=int, default=8)
    ap.add_argument("--net", type=int, default=36)
    ap.add_argument("--barev", type=int, default=4)
    ap.add_argument("--xmap", default="div")
    ap.add_argument("--flagat", type=int, default=3)
    ap.add_argument("--noearly", action="store_true")
    ap.add_argument("--touch", action="store_true")
    ap.add_argument("--ttouch", type=int, default=0)
    a = ap.parse_args()
    open(a.o, "w").write(gen(a.depth, a.wpb, a.net, a.barev, a.xmap, a.flagat, not a.noearly, a.touch, a.ttouch))
```
